```python
import torch

def _softmax(x, axis=-1):
    return torch.softmax(x, dim=axis)
def _gelu(x):
    return torch.nn.functional.gelu(x, approximate="tanh")
def _silu(x):
    return torch.nn.functional.silu(x)
def _sigmoid(x):
    return torch.sigmoid(x)
def _layernorm(x, axis=-1, eps=1e-5):
    m = x.mean(dim=axis, keepdim=True)
    v = x.var(dim=axis, keepdim=True, unbiased=False)
    return (x - m) / torch.sqrt(v + eps)
def _scatter_add(tgt, idx, src, axis=0):
    return tgt.clone().index_add_(axis, idx, src)
def _segment_sum(src, seg, n):
    out = torch.zeros((n,) + src.shape[1:], dtype=src.dtype)
    return out.index_add_(0, seg, src)
def _pad(x, pw):
    flat = tuple(v for pair in reversed(pw) for v in pair)
    return torch.nn.functional.pad(x, flat)

kernel_name = 'interleave_layers__softmax_full_mha__mixer_token_mlp__prompt'

def setup_inputs():

    _w = (lambda a: (lambda t: t.to(torch.bfloat16) if t.is_floating_point() else t)(torch.as_tensor(a)))
    def _A_setup():
        B, S, D = 1, 2048, 512
        return {
            "x": _w((lambda *s: torch.randn(*s, dtype=torch.bfloat16) * 0.05)(B, S, D)),
            "wqkv": _w((lambda *s: torch.randn(*s, dtype=torch.bfloat16) * 0.05)(D, 3 * D)),
            "wo": _w((lambda *s: torch.randn(*s, dtype=torch.bfloat16) * 0.05)(D, D)),
        }
    _A_in = _A_setup()

    def _B_setup():
        B, S, D, F = 1, 2048, 512, 1792
        return {
            "x": _w((lambda *s: torch.randn(*s, dtype=torch.bfloat16) * 0.05)(B, S, D)),
            "w1": _w((lambda *s: torch.randn(*s, dtype=torch.bfloat16) * 0.8)(S, F) * (S ** -0.5)),
            "b1": _w((lambda *s: torch.randn(*s, dtype=torch.bfloat16) * 12.8)(F) * 0.02),
            "w2": _w((lambda *s: torch.randn(*s, dtype=torch.bfloat16) * 0.2)(F, S) * (F ** -0.5)),
            "b2": _w((lambda *s: torch.randn(*s, dtype=torch.bfloat16) * 3.2)(S) * 0.02),
        }
    _B_in = _B_setup()

    return {
        "A_x": _A_in["x"],
        "A_wqkv": _A_in["wqkv"],
        "A_wo": _A_in["wo"],
        "B_x": _B_in["x"],
        "B_w1": _B_in["w1"],
        "B_b1": _B_in["b1"],
        "B_w2": _B_in["w2"],
        "B_b2": _B_in["b2"],
    }

def reference(A_x, A_wqkv, A_wo, B_x, B_w1, B_b1, B_w2, B_b2):
    def _A_ref(x, wqkv, wo):
        B, S, D = x.shape
        H = 32; Dh = D // H
        qkv = (lambda x, *d: x.permute(*d))((x @ wqkv).reshape(B, S, 3, H, Dh), 2, 0, 3, 1, 4)
        q, k, v = qkv[0], qkv[1], qkv[2]
        scale = Dh ** -0.5
        scores = torch.einsum("bhqd,bhkd->bhqk", q, k) * scale
        p = _softmax(scores, axis=-1)
        o = torch.einsum("bhqk,bhkd->bhqd", p, v)
        return (lambda x, *d: x.permute(*d))(o, 0, 2, 1, 3).reshape(B, S, D) @ wo

    def _B_ref(x, w1, b1, w2, b2):
        B, S, D = x.shape
        h = _layernorm(x, axis=-1)
        u = torch.einsum("bsd,sf->bdf", h, w1) + b1
        u = _gelu(u)
        y = torch.einsum("bdf,fs->bds", u, w2) + b2
        return (lambda x, *d: x.permute(*d))(y, 0, 2, 1)

    x = A_x
    x = x + _A_ref(_layernorm(x, axis=-1), A_wqkv, A_wo)
    x = x + _B_ref(_layernorm(x, axis=-1), B_w1, B_b1, B_w2, B_b2)
    x = x + _A_ref(_layernorm(x, axis=-1), A_wqkv, A_wo)
    x = x + _B_ref(_layernorm(x, axis=-1), B_w1, B_b1, B_w2, B_b2)
    return x
```

```python
class Asm:
    def __init__(self):
        self.lines = []
        self.uid = 0
    def __call__(self, s):
        for ln in s.split("\n"):
            ln = ln.strip()
            if not ln: continue
            if ln.endswith(":") or ln.startswith("."):
                self.lines.append(ln)
            else:
                self.lines.append("    " + ln)
    def label(self, base):
        self.uid += 1
        return f"L_{base}_{self.uid}"
    def text(self):
        return "\n".join(self.lines) + "\n"

def vr(b, n=1):
    return f"v{b}" if n == 1 else f"v[{b}:{b+n-1}]"
def sr(b, n=1):
    return f"s{b}" if n == 1 else f"s[{b}:{b+n-1}]"

class Regs:
    def __init__(self, start=0):
        self.n = start
        self.hi = start
    def get(self, cnt=1, align=1):
        if cnt >= 2 and align < 2: align = 2
        self.n = (self.n + align - 1) // align * align
        b = self.n
        self.n += cnt
        self.hi = max(self.hi, self.n)
        return b

import struct
def f2u(x):
    return struct.unpack("<I", struct.pack("<f", x))[0]
def fhex(x):
    return f"0x{f2u(x):08x}"
```

```python
import math, sys
from asmlib import *

NAME = "interleave_layers__softmax_full_mha__mixer_token_mlp__prompt"
KA_X, KA_WQKV, KA_WO, KA_W1, KA_B1, KA_W2, KA_B2, KA_OUT, KA_DBG, KA_WS = 0, 8, 16, 32, 40, 48, 56, 64, 72, 80
WS_QF = 0x000000
WS_KV = 0x200000
WS_OF = 0x600000
WS_XB = 0x800000
WS_HF = 0xA00000
WS_UF = 0xC00000
WS_EX = 0xE00000
WS_SIZE = 0x1000000
EPS = 1e-5
QSCALE = 0.25 * math.log2(math.e)
ONES = 0x3F803F80

kernels = []

def kstart(a, name):
    a(f".globl {name}\n.p2align 8\n.type {name},@function\n{name}:")

def srd(a, s, size):
    a(f"s_mov_b32 s{s+2}, {size:#x}\ns_mov_b32 s{s+3}, 0x20000")

def half_sum(a, x, t):
    a(f"v_mov_b32 v{t}, v{x}\ns_nop 1\nv_permlane32_swap_b32 v{x}, v{t}\ns_nop 1\nv_add_f32 v{x}, v{x}, v{t}")

def gen_qkv(a):
    kstart(a, "qkv1_kernel")
    a(f"s_load_dwordx2 s[4:5], s[0:1], {KA_X}\ns_branch L_qkv_body")
    kstart(a, "qkv2_kernel")
    a(f"s_load_dwordx2 s[4:5], s[0:1], {KA_OUT}")
    a("L_qkv_body:")
    a(f"""s_load_dwordx2 s[8:9], s[0:1], {KA_WQKV}
    s_load_dwordx2 s[12:13], s[0:1], {KA_WS}
    s_cmp_ge_u32 s2, 256
    s_cbranch_scc1 L_qkv_end""")
    R = Regs(1)
    vL, vT0, vT1, vT2 = R.get(), R.get(), R.get(), R.get()
    vOX, vOW = R.get(), R.get()
    vAX = [R.get() for _ in range(8)]
    vAW = [R.get() for _ in range(2)]
    vOne = R.get()
    vS = [R.get() for _ in range(4)]
    acc0 = R.get(16, 4); acc1 = R.get(16, 4)
    fr = R.get(48, 4)
    sW, sCB, sRB, sSI, sCH, sOX, sOW, sM = 16, 17, 18, 19, 20, 21, 22, 23
    a(f"""v_lshrrev_b32 v{vT0}, 6, v0
    v_and_b32 v{vL}, 63, v0
    s_and_b32 s{sCB}, s2, 7
    v_readfirstlane_b32 s{sW}, v{vT0}
    s_lshr_b32 s{sRB}, s2, 3""")
    srd(a, 4, 2048*512*2); srd(a, 8, 512*1536*2); srd(a, 12, WS_SIZE)
    a(f"""v_lshrrev_b32 v{vT0}, 3, v0
    v_lshrrev_b32 v{vT1}, 4, v0
    v_and_b32 v{vT2}, 7, v{vT1}
    v_xor_b32 v{vT2}, v{vT2}, v0
    v_and_b32 v{vT2}, 7, v{vT2}
    v_lshlrev_b32 v{vT2}, 4, v{vT2}
    v_lshl_add_u32 v{vOX}, v{vT0}, 10, v{vT2}
    v_and_b32 v{vT1}, 1, v{vT1}
    v_lshlrev_b32 v{vT1}, 2, v{vT1}
    v_xor_b32 v{vT1}, v{vT1}, v0
    v_and_b32 v{vT1}, 7, v{vT1}
    v_lshlrev_b32 v{vT1}, 4, v{vT1}
    v_mul_u32_u24 v{vOW}, 3072, v{vT0}
    v_add_u32 v{vOW}, v{vOW}, v{vT1}
    s_lshl_b32 s{sOX}, s{sRB}, 16
    s_lshl_b32 s{sOW}, s{sCB}, 7
    s_lshl_b32 s{sM}, s{sW}, 12
    s_waitcnt lgkmcnt(0)""")
    def dma(c):
        slot = c % 4
        a(f"""s_add_u32 m0, s{sM}, {slot*32768}
        s_nop 0
        buffer_load_dwordx4 v{vOW}, s[8:11], s{sOW} offen lds
        buffer_load_dwordx4 v{vOW}, s[8:11], s{sOW} offen offset:1024 lds
        buffer_load_dwordx4 v{vOW}, s[8:11], s{sOW} offen offset:2048 lds
        s_add_u32 m0, s{sM}, {slot*32768+3072}
        s_add_u32 s{sOW}, s{sOW}, {64*3072}
        buffer_load_dwordx4 v{vOX}, s[4:7], s{sOX} offen lds
        s_add_u32 s{sOX}, s{sOX}, 128""")
    for c in range(4): dma(c)
    def sentinel():
        a(f"""v_lshlrev_b32 v{vT0}, 2, v0
        v_mov_b32 v{vT1}, -1
        s_lshl_b32 s24, s2, 11
        s_add_u32 s24, s24, {WS_EX}
        buffer_store_dword v{vT1}, v{vT0}, s[12:15], s24 offen""")
    NST = 0
    a(f"""s_and_b32 s{sSI}, s{sW}, 1
    s_bfe_u32 s{sCH}, s{sW}, 0x10001
    v_and_b32 v{vT0}, 31, v{vL}
    v_lshrrev_b32 v{vT1}, 3, v{vT0}
    v_lshlrev_b32 v{vT1}, 12, v{vT1}
    v_and_b32 v{vT2}, 7, v{vT0}
    v_lshl_add_u32 v{vT1}, v{vT2}, 7, v{vT1}
    s_lshl_b32 s24, s{sSI}, 14
    s_add_u32 s24, s24, 3072
    v_add_u32 v{vT1}, s24, v{vT1}
    v_bfe_u32 v{vT0}, v{vL}, 1, 3
    v_lshrrev_b32 v{vT2}, 5, v{vL}
    v_xor_b32 v{vT0}, v{vT0}, v{vT2}""")
    for t in range(4):
        a(f"""v_xor_b32 v{vT2}, {2*t}, v{vT0}
        v_lshl_add_u32 v{vAX[t]}, v{vT2}, 4, v{vT1}
        v_add_u32 v{vAX[4+t]}, 0x10000, v{vAX[t]}""")
    a(f"""v_lshrrev_b32 v{vT0}, 5, v{vL}
    v_lshlrev_b32 v{vT0}, 12, v{vT0}
    v_bfe_u32 v{vT1}, v{vL}, 2, 2
    v_lshl_add_u32 v{vT0}, v{vT1}, 7, v{vT0}
    v_and_b32 v{vT1}, 3, v{vL}
    v_lshl_add_u32 v{vT0}, v{vT1}, 3, v{vT0}
    v_bfe_u32 v{vT1}, v{vL}, 4, 1
    v_lshl_add_u32 v{vT0}, v{vT1}, 5, v{vT0}
    v_bfe_u32 v{vT1}, v{vL}, 3, 1
    v_xor_b32 v{vT1}, s{sCH}, v{vT1}
    v_lshl_add_u32 v{vAW[0]}, v{vT1}, 6, v{vT0}
    v_add_u32 v{vAW[1]}, 0x10000, v{vAW[0]}
    v_mov_b32 v{vOne}, {ONES:#x}""")
    for i in range(4): a(f"v_mov_b32 v{vS[i]}, 0")
    for i in range(16): a(f"v_mov_b32 v{acc0+i}, 0\nv_mov_b32 v{acc1+i}, 0")
    a(f"s_cmp_ge_u32 s{sW}, 4\ns_cbranch_scc1 L_qkv_vwave")

    def chunk_head(c):
        if c == 0: n = 3*4 + NST
        else:
            last = min(c+2, 7)
            n = 4*(last - c) + (NST if c <= 3 else 0)
        a(f"s_waitcnt vmcnt({n})\ns_barrier")
        if 1 <= c and c+3 < 8: dma(c+3)
    def xoff(c):
        slot = c % 4
        return (slot >> 1), (slot & 1)*32768

    TAB = 131072
    for c in range(8):
        chunk_head(c)
        hb, so = xoff(c)
        def rd(t):
            f = fr + 12*t
            a(f"ds_read_b128 {vr(f,4)}, v{vAX[4*hb+t]} offset:{so}")
            for g in range(2):
                a(f"ds_read_b64_tr_b16 {vr(f+4+4*g,2)}, v{vAW[hb]} offset:{so+t*8192+g*1024}")
                a(f"ds_read_b64_tr_b16 {vr(f+6+4*g,2)}, v{vAW[hb]} offset:{so+t*8192+g*1024+512}")
        def cp(t):
            f = fr + 12*t
            a(f"v_mfma_f32_32x32x16_bf16 {vr(acc0,16)}, {vr(f+4,4)}, {vr(f,4)}, {vr(acc0,16)}")
            for i in range(4): a(f"v_dot2_f32_bf16 v{vS[0]}, v{f+4+i}, v{vOne}, v{vS[0]}")
            a(f"v_mfma_f32_32x32x16_bf16 {vr(acc1,16)}, {vr(f+8,4)}, {vr(f,4)}, {vr(acc1,16)}")
            for i in range(4): a(f"v_dot2_f32_bf16 v{vS[1]}, v{f+8+i}, v{vOne}, v{vS[1]}")
        rd(0); rd(1); rd(2)
        a("s_waitcnt lgkmcnt(10)"); cp(0); rd(3)
        a("s_waitcnt lgkmcnt(10)"); cp(1)
        a("s_waitcnt lgkmcnt(5)"); cp(2)
        a("s_waitcnt lgkmcnt(0)"); cp(3)
    a("s_nop 2")
    half_sum(a, vS[0], vT0); half_sum(a, vS[1], vT0)
    a(f"""v_and_b32 v{vT0}, 31, v{vL}
    s_lshl_b32 s24, s{sW}, 8
    s_add_u32 s24, s24, {TAB+512}
    v_lshlrev_b32 v{vT1}, 2, v{vT0}
    v_add_u32 v{vT2}, s24, v{vT1}
    ds_write_b32 v{vT2}, v{vS[0]}
    ds_write_b32 v{vT2}, v{vS[1]} offset:128
    s_lshl_b32 s25, s{sSI}, 7
    s_add_u32 s25, s25, {TAB}
    v_add_u32 v{vT1}, s25, v{vT1}
    v_lshrrev_b32 v{vT2}, 5, v{vL}
    v_lshlrev_b32 v{vT2}, 4, v{vT2}
    v_add_u32 v{vT2}, s24, v{vT2}
    s_waitcnt lgkmcnt(0)""")
    for g in range(2):
        for q in range(4):
            a(f"ds_read_b128 {vr(fr+16*g+4*q,4)}, v{vT2} offset:{g*128+q*32}")
    vMu, vR, vRq = fr+32, fr+34, fr+36
    a(f"""s_barrier
    ds_read_b32 v{vMu}, v{vT1}
    ds_read_b32 v{vR}, v{vT1} offset:256""")
    a(f"""s_lshl_b32 s24, s{sCB}, 2
    s_lshl_b32 s25, s{sCH}, 1
    s_add_u32 s24, s24, s25
    s_lshl_b32 s24, s24, 6
    s_lshl_b32 s25, s{sRB}, 1
    s_add_u32 s25, s25, s{sSI}
    s_add_u32 s24, s24, s25
    s_lshl_b32 s26, s24, 10
    s_add_u32 s26, s26, {WS_QF}
    s_add_u32 s27, s26, {64*1024}
    s_lshl_b32 s28, s24, 11
    s_add_u32 s28, s28, {WS_KV}
    s_add_u32 s29, s28, {64*2048}
    v_lshlrev_b32 v{vOX}, 4, v{vL}
    v_and_b32 v{vT0}, 0x33, v{vL}
    v_bfe_u32 v{vT1}, v{vL}, 2, 1
    v_lshl_add_u32 v{vT0}, v{vT1}, 3, v{vT0}
    v_bfe_u32 v{vT1}, v{vL}, 3, 1
    v_lshl_add_u32 v{vT0}, v{vT1}, 2, v{vT0}
    v_lshlrev_b32 v{vOW}, 4, v{vT0}
    s_waitcnt lgkmcnt(0)
    v_mul_f32 v{vRq}, {fhex(QSCALE)}, v{vR}""")
    for g, (acc, rr) in enumerate(((acc0, vRq), (acc1, vR))):
        for i in range(16):
            a(f"v_fma_f32 v{acc+i}, -v{vMu}, v{fr+16*g+i}, v{acc+i}")
        for i in range(16):
            a(f"v_mul_f32 v{acc+i}, v{rr}, v{acc+i}")
        for i in range(8):
            a(f"v_cvt_pk_bf16_f32 v{fr+16*g+i}, v{acc+2*i}, v{acc+2*i+1}")
        vo = vOX if g == 0 else vOW
        a(f"buffer_store_dwordx4 {vr(fr+16*g,4)}, v{vo}, s[12:15], s{26+2*g} offen")
        a(f"buffer_store_dwordx4 {vr(fr+16*g+4,4)}, v{vo}, s[12:15], s{27+2*g} offen")
    sentinel()
    a("s_endpgm")
    a("L_qkv_vwave:")
    for c in range(8):
        chunk_head(c)
        hb, so = xoff(c)
        for t in range(4):
            f = fr + 8*t
            a(f"ds_read_b128 {vr(f,4)}, v{vAX[4*hb+t]} offset:{so}")
            a(f"ds_read_b64_tr_b16 {vr(f+4,2)}, v{vAW[hb]} offset:{so+t*8192+2048}")
            a(f"ds_read_b64_tr_b16 {vr(f+6,2)}, v{vAW[hb]} offset:{so+t*8192+2048+512}")
        for t in range(4):
            f = fr + 8*t
            a(f"s_waitcnt lgkmcnt({9-3*t})")
            a(f"v_mfma_f32_32x32x16_bf16 {vr(acc0,16)}, {vr(f,4)}, {vr(f+4,4)}, {vr(acc0,16)}")
            for i in range(4):
                a(f"v_dot2_f32_bf16 v{vS[0]}, v{f+i}, v{vOne}, v{vS[0]}")
                a(f"v_dot2_f32_bf16 v{vS[1]}, v{f+i}, v{f+i}, v{vS[1]}")
                a(f"v_dot2_f32_bf16 v{vS[2]}, v{f+4+i}, v{vOne}, v{vS[2]}")
    a("s_nop 2")
    half_sum(a, vS[0], vT0); half_sum(a, vS[1], vT0); half_sum(a, vS[2], vT0)
    a(f"""v_mul_f32 v{vS[0]}, {fhex(1/512)}, v{vS[0]}
    v_mul_f32 v{vS[1]}, {fhex(1/512)}, v{vS[1]}
    v_fma_f32 v{vS[1]}, -v{vS[0]}, v{vS[0]}, v{vS[1]}
    v_max_f32 v{vS[1]}, 0, v{vS[1]}
    v_add_f32 v{vS[1]}, {fhex(EPS)}, v{vS[1]}
    v_rsq_f32 v{vS[1]}, v{vS[1]}
    v_and_b32 v{vT0}, 31, v{vL}
    s_lshl_b32 s25, s{sSI}, 7
    s_add_u32 s25, s25, {TAB}
    v_lshlrev_b32 v{vT1}, 2, v{vT0}
    v_add_u32 v{vT1}, s25, v{vT1}
    ds_write_b32 v{vT1}, v{vS[0]}
    ds_write_b32 v{vT1}, v{vS[1]} offset:256
    v_lshrrev_b32 v{vT2}, 5, v{vL}
    v_lshlrev_b32 v{vT2}, 4, v{vT2}
    v_add_u32 v{vT2}, s25, v{vT2}
    s_waitcnt lgkmcnt(0)
    s_barrier""")
    for q in range(4):
        a(f"ds_read_b128 {vr(fr+4*q,4)}, v{vT2} offset:{q*32}")
        a(f"ds_read_b128 {vr(fr+16+4*q,4)}, v{vT2} offset:{256+q*32}")
    a(f"""s_lshl_b32 s24, s{sCB}, 2
    s_lshl_b32 s25, s{sCH}, 1
    s_add_u32 s24, s24, s25
    s_lshl_b32 s24, s24, 6
    s_lshl_b32 s25, s{sRB}, 1
    s_add_u32 s25, s25, s{sSI}
    s_add_u32 s24, s24, s25
    s_lshl_b32 s28, s24, 11
    s_add_u32 s28, s28, {WS_KV+1024}
    v_and_b32 v{vT0}, 15, v{vL}
    v_lshlrev_b32 v{vT0}, 4, v{vT0}
    v_lshrrev_b32 v{vT1}, 5, v{vL}
    v_lshl_add_u32 v{vT0}, v{vT1}, 8, v{vT0}
    v_bfe_u32 v{vT1}, v{vL}, 4, 1
    v_lshl_add_u32 v{vOX}, v{vT1}, 17, v{vT0}
    s_waitcnt lgkmcnt(0)""")
    for i in range(16):
        a(f"v_fma_f32 v{acc0+i}, -v{fr+i}, v{vS[2]}, v{acc0+i}")
    for i in range(16):
        a(f"v_mul_f32 v{acc0+i}, v{fr+16+i}, v{acc0+i}")
    for i in range(8):
        a(f"v_cvt_pk_bf16_f32 v{fr+32+i}, v{acc0+2*i}, v{acc0+2*i+1}")
    a(f"buffer_store_dwordx4 {vr(fr+32,4)}, v{vOX}, s[12:15], s28 offen")
    a(f"buffer_store_dwordx4 {vr(fr+36,4)}, v{vOX}, s[12:15], s28 offen offset:512")
    sentinel()
    a("L_qkv_end:\ns_endpgm")
    kernels.append(("qkv1_kernel", R.hi)); kernels.append(("qkv2_kernel", R.hi))
    return TAB + 512 + 1024

def gen_attn(a):
    kstart(a, "attn_kernel")
    a(f"""s_load_dwordx2 s[12:13], s[0:1], {KA_WS}
    s_cmp_ge_u32 s2, 256
    s_cbranch_scc1 L_at_end""")
    R = Regs(1)
    vL, vT0, vT1 = R.get(), R.get(), R.get()
    vOff, vAK, vAV, vIdx = R.get(), R.get(), R.get(), R.get()
    vQ = R.get(4, 4)
    vK = [R.get(4, 4) for _ in range(2)]
    vV = [R.get(8, 4) for _ in range(2)]
    vSb = [R.get(16, 4) for _ in range(4)]
    vO = R.get(16, 4); vC = R.get(16, 4)
    sW, sH, sQT, sKV, sM, sIt, sPass = 16, 17, 18, 19, 20, 21, 22
    a(f"""v_lshrrev_b32 v{vT0}, 6, v0
    v_and_b32 v{vL}, 63, v0
    s_and_b32 s{sH}, s2, 7
    v_readfirstlane_b32 s{sW}, v{vT0}
    s_lshl_b32 s{sH}, s{sH}, 2
    s_bfe_u32 s24, s2, 0x20003
    s_add_u32 s{sH}, s{sH}, s24
    s_lshr_b32 s{sQT}, s2, 5
    s_lshl_b32 s{sQT}, s{sQT}, 3
    v_lshlrev_b32 v{vOff}, 4, v{vL}""")
    srd(a, 12, WS_SIZE)
    a(f"""s_add_u32 s{sQT}, s{sQT}, s{sW}
    s_lshl_b32 s{sM}, s{sW}, 10
    s_lshl_b32 s{sKV}, s{sH}, 17
    s_add_u32 s{sKV}, s{sKV}, {WS_KV}
    s_add_u32 s{sKV}, s{sKV}, s{sM}
    s_lshl_b32 s24, s{sH}, 6
    s_add_u32 s24, s24, s{sQT}
    s_lshl_b32 s24, s24, 10
    s_add_u32 s24, s24, {WS_QF}
    s_waitcnt lgkmcnt(0)
    buffer_load_dwordx4 {vr(vQ,4)}, v{vOff}, s[12:15], s24 offen""")
    for n in range(16):
        a(f"""s_add_u32 m0, s{sM}, {n*8192}
        s_nop 0
        buffer_load_dwordx4 v{vOff}, s[12:15], s{sKV} offen lds
        s_add_u32 s{sKV}, s{sKV}, 8192""")
    a(f"""v_mov_b32 v{vIdx}, 0xdddd
    s_mov_b32 s26, 0xffff
    s_mov_b32 s27, 0xffff
    s_mov_b32 s{sPass}, 0""")
    for p in range(2):
        for i in range(8): a(f"v_mov_b32 v{vV[p]+i}, {ONES:#x}")
    for i in range(16): a(f"v_mov_b32 v{vC+i}, 0")
    a(f"""v_and_b32 v{vT0}, 15, v{vL}
    v_lshlrev_b32 v{vT0}, 4, v{vT0}
    v_lshrrev_b32 v{vT1}, 5, v{vL}
    v_lshl_add_u32 v{vT1}, v{vT1}, 8, v{vT0}
    s_waitcnt vmcnt(14)
    s_barrier""")
    def rdK(buf, off): a(f"ds_read_b128 {vr(vK[buf],4)}, v{vAK} offset:{off}")
    def rdV(buf, off):
        a(f"""s_mov_b64 exec, s[26:27]
        ds_read_b128 {vr(vV[buf],4)}, v{vAV} offset:{off}
        ds_read_b128 {vr(vV[buf]+4,4)}, v{vAV} offset:{off+512}
        s_mov_b64 exec, -1""")
    def qk(sb, kb): a(f"v_mfma_f32_32x32x16_bf16 {vr(vSb[sb],16)}, {vr(vK[kb],4)}, {vr(vQ,4)}, {vr(vC,16)}")
    def pv(vb, f, sb): a(f"v_smfmac_f32_32x32x32_bf16 {vr(vO,16)}, {vr(vV[vb]+4*f,4)}, {vr(vSb[sb]+8*f,8)}, v{vIdx}")
    def ex(sb, i): a(f"v_exp_f32 v{vSb[sb]+i}, v{vSb[sb]+i}")
    a("L_at_pass:")
    a(f"""v_mov_b32 v{vAK}, v{vOff}
    v_add_u32 v{vAV}, 1024, v{vT1}""")
    for i in range(16): a(f"v_mov_b32 v{vO+i}, 0")
    for i in range(8): a(f"v_mov_b32 v{vSb[3]+8+i}, 0")
    rdK(0, 0); rdK(1, 2048)
    a("s_waitcnt lgkmcnt(1)"); qk(0, 0)
    a("s_waitcnt lgkmcnt(0)"); qk(1, 1)
    rdK(0, 4096); rdV(0, 0)
    a(f"s_mov_b32 s{sIt}, 0\ns_nop 7")
    a(".p2align 5\nL_at_loop:")
    for u in range(4):
        sb = u; pb = (u+3) % 4
        for i in range(3): ex(sb, i)
        pv((u+1) % 2, 1, pb)
        rdV((u+1) % 2, (u+1)*2048)
        for i in range(3, 8): ex(sb, i)
        a("s_waitcnt lgkmcnt(2)")
        qk((u+2) % 4, u % 2)
        rdK((u+1) % 2, (u+3)*2048)
        for i in range(8, 13): ex(sb, i)
        pv(u % 2, 0, sb)
        if u == 3:
            a(f"v_add_u32 v{vAK}, 8192, v{vAK}\nv_add_u32 v{vAV}, 8192, v{vAV}")
        for i in range(13, 16): ex(sb, i)
    a(f"""s_add_u32 s{sIt}, s{sIt}, 1
    s_cmp_lg_u32 s{sIt}, s{sPass+1}
    s_cbranch_scc1 L_at_nobar
    s_waitcnt vmcnt(0)
    s_barrier
    L_at_nobar:
    s_cmp_lt_u32 s{sIt}, 16
    s_cbranch_scc1 L_at_loop""")
    a("s_nop 1")
    pv(1, 1, 3)
    a("s_waitcnt lgkmcnt(0)\ns_nop 15")
    vRc = vSb[0]
    a(f"""v_rcp_f32 v{vRc}, v{vO+8}
    s_cmp_lg_u32 s{sPass}, 0
    s_cbranch_scc1 L_at_fin
    v_cmp_le_f32 vcc, {fhex(2.0**-60)}, v{vO+8}
    s_mov_b64 s[28:29], vcc
    v_cmp_ge_f32 vcc, {fhex(2.0**60)}, v{vO+8}
    s_and_b64 s[28:29], s[28:29], vcc
    v_mul_f32 v{vRc+2}, 0, v{vO}""")
    for i in range(1, 8): a(f"v_fma_f32 v{vRc+2}, 0, v{vO+i}, v{vRc+2}")
    a(f"""v_cmp_eq_f32 vcc, 0, v{vRc+2}
    s_and_b64 s[28:29], s[28:29], vcc
    s_cmp_eq_u64 s[28:29], -1
    s_cbranch_scc1 L_at_fin""")
    vM = vSb[1]
    a(f"""v_mov_b32 v{vAK}, v{vOff}
    v_mov_b32 v{vM}, 0xff800000
    s_mov_b32 s{sIt}, 0
    L_at_max:
    ds_read_b128 {vr(vK[0],4)}, v{vAK}
    s_waitcnt lgkmcnt(0)
    v_mfma_f32_32x32x16_bf16 {vr(vSb[0],16)}, {vr(vK[0],4)}, {vr(vQ,4)}, 0
    s_nop 15""")
    for i in range(8): a(f"v_max3_f32 v{vM}, v{vSb[0]+2*i}, v{vSb[0]+2*i+1}, v{vM}")
    a(f"""v_add_u32 v{vAK}, 2048, v{vAK}
    s_add_u32 s{sIt}, s{sIt}, 1
    s_cmp_lt_u32 s{sIt}, 64
    s_cbranch_scc1 L_at_max
    v_mov_b32 v{vM+1}, v{vM}
    s_nop 1
    v_permlane32_swap_b32 v{vM}, v{vM+1}
    s_nop 1
    v_max_f32 v{vM}, v{vM}, v{vM+1}""")
    for i in range(16): a(f"v_sub_f32 v{vC+i}, 0, v{vM}")
    a(f"""s_mov_b32 s{sPass}, 1
    s_mov_b32 s{sPass+1}, 100
    s_branch L_at_pass
    L_at_fin:""")
    for i in range(8): a(f"v_mul_f32 v{vO+i}, v{vRc}, v{vO+i}")
    for i in range(4): a(f"v_cvt_pk_bf16_f32 v{vK[0]+i}, v{vO+2*i}, v{vO+2*i+1}")
    a(f"""s_lshl_b32 s24, s{sQT}, 5
    s_add_u32 s24, s24, s{sH}
    s_lshl_b32 s24, s24, 10
    s_add_u32 s24, s24, {WS_OF}
    buffer_store_dwordx4 {vr(vK[0],4)}, v{vOff}, s[12:15], s24 offen
    L_at_end:
    s_endpgm""")
    idx = a.lines.index(f"    s_mov_b32 s{sPass}, 0")
    a.lines.insert(idx, f"    s_mov_b32 s{sPass+1}, 1")
    kernels.append(("attn_kernel", R.hi))
    return 131072 + 8192

def gen_gemm(a, kind):
    P = dict(
        wo=dict(NK=4, D=4, slot0=1, ka=KA_WO, wsize=512*512*2, RS=1024, act=WS_OF, aks=32, nwg=256, worder='WA'),
        w1=dict(NK=16, D=8, slot0=0, ka=KA_W1, wsize=2048*1792*2, RS=3584, act=WS_HF, aks=128, nwg=224, worder='WA'),
        w2=dict(NK=14, D=8, slot0=0, ka=KA_W2, wsize=1792*2048*2, RS=4096, act=WS_UF, aks=112, nwg=256, worder='AW'),
    )[kind]
    NK, D, RS = P['NK'], P['D'], P['RS']
    L = f"L_{kind}"
    if kind == "wo":
        kstart(a, "wo1_kernel")
        a(f"s_load_dwordx2 s[4:5], s[0:1], {KA_X}\ns_branch {L}_body")
        kstart(a, "wo2_kernel")
        a(f"s_load_dwordx2 s[4:5], s[0:1], {KA_OUT}")
        a(f"{L}_body:")
    else:
        kstart(a, f"{kind}_kernel")
        a(f"s_load_dwordx2 s[4:5], s[0:1], {KA_B1 if kind=='w1' else KA_B2}")
        if kind == "w2": a(f"s_load_dwordx2 s[32:33], s[0:1], {KA_OUT}")
    a(f"""s_load_dwordx2 s[8:9], s[0:1], {P['ka']}
    s_load_dwordx2 s[12:13], s[0:1], {KA_WS}
    s_cmp_ge_u32 s2, {P['nwg']}
    s_cbranch_scc1 {L}_end""")
    R = Regs(1)
    vL, vT0, vT1, vT2 = R.get(), R.get(), R.get(), R.get()
    vOW0, vOW1, vOff = R.get(), R.get(), R.get()
    vAW = [R.get() for _ in range(4)]
    vE = R.get(8, 4)
    acc = R.get(32, 4)
    wf = R.get(16, 4)
    af = R.get(8*D, 4)
    sW, sAI, sKQ, sAT, sWT, sOW, sOA, sM = 16, 17, 18, 19, 20, 21, 22, 23
    a(f"""v_lshrrev_b32 v{vT0}, 6, v0
    v_and_b32 v{vL}, 63, v0
    s_and_b32 s24, s2, 7
    v_readfirstlane_b32 s{sW}, v{vT0}
    s_lshr_b32 s25, s2, 3""")
    if kind == "wo":
        a(f"""s_and_b32 s{sAT}, s25, 3
        s_lshl_b32 s24, s24, 2
        s_add_u32 s{sAT}, s{sAT}, s24
        s_lshr_b32 s{sWT}, s25, 2""")
        srd(a, 4, 2048*512*2)
    elif kind == "w1":
        a(f"""s_and_b32 s{sAT}, s25, 3
        s_and_b32 s26, s24, 1
        s_lshl_b32 s26, s26, 2
        s_add_u32 s{sAT}, s{sAT}, s26
        s_lshr_b32 s24, s24, 1
        s_mul_i32 s24, s24, 7
        s_lshr_b32 s{sWT}, s25, 2
        s_add_u32 s{sWT}, s{sWT}, s24""")
        srd(a, 4, 1792*2)
    else:
        a(f"""s_and_b32 s{sAT}, s25, 7
        s_lshl_b32 s24, s24, 2
        s_lshr_b32 s{sWT}, s25, 3
        s_add_u32 s{sWT}, s{sWT}, s24""")
        srd(a, 4, 2048*2); srd(a, 32, 2048*512*2)
    srd(a, 8, P['wsize']); srd(a, 12, WS_SIZE)
    a(f"""v_lshrrev_b32 v{vT0}, 3, v{vL}
    v_bfe_u32 v{vT1}, v{vL}, 4, 1
    v_lshlrev_b32 v{vT1}, 2, v{vT1}
    v_xor_b32 v{vT1}, v{vT1}, v{vL}
    v_and_b32 v{vT1}, 7, v{vT1}
    v_lshlrev_b32 v{vT1}, 4, v{vT1}
    v_mul_u32_u24 v{vOW0}, {RS}, v{vT0}
    v_add_u32 v{vOW0}, v{vOW0}, v{vT1}
    v_add_u32 v{vOW1}, {8*RS-1024}, v{vOW0}
    v_lshlrev_b32 v{vOff}, 4, v{vL}
    s_and_b32 s{sAI}, s{sW}, 1
    s_lshr_b32 s{sKQ}, s{sW}, 1
    s_mul_i32 s{sOW}, s{sW}, {16*RS}
    s_lshl_b32 s24, s{sWT}, 7
    s_add_u32 s{sOW}, s{sOW}, s24
    s_lshl_b32 s{sM}, s{sW}, 11
    s_lshl_b32 s24, s{sAT}, 1
    s_add_u32 s24, s24, s{sAI}
    s_mul_i32 s{sOA}, s24, {P['aks']*1024}
    s_lshl_b32 s24, s{sKQ}, 11
    s_add_u32 s{sOA}, s{sOA}, s24
    s_add_u32 s{sOA}, s{sOA}, {P['act']}""")
    if kind == "wo":
        a(f"""v_and_b32 v{vT0}, 31, v{vL}
        v_lshlrev_b32 v{vT0}, 10, v{vT0}
        v_lshrrev_b32 v{vT1}, 5, v{vL}
        v_lshl_add_u32 v{vT0}, v{vT1}, 3, v{vT0}
        s_lshl_b32 s24, s{sAT}, 16
        s_lshl_b32 s25, s{sAI}, 15
        s_add_u32 s24, s24, s25
        s_lshl_b32 s25, s{sWT}, 7
        s_add_u32 s24, s24, s25
        s_lshl_b32 s25, s{sKQ}, 5
        s_add_u32 s24, s24, s25""")
        NE = 2
    elif kind == "w1":
        a(f"""v_lshrrev_b32 v{vT0}, 5, v{vL}
        v_lshlrev_b32 v{vT0}, 3, v{vT0}
        s_lshl_b32 s24, s{sWT}, 7
        s_lshl_b32 s25, s{sKQ}, 5
        s_add_u32 s24, s24, s25""")
        NE = 2
    else:
        a(f"""v_and_b32 v{vT0}, 31, v{vL}
        v_lshlrev_b32 v{vT0}, 1, v{vT0}
        s_lshr_b32 s25, s{sKQ}, 1
        s_lshl_b32 s26, s{sWT}, 1
        s_add_u32 s26, s26, s25
        s_lshl_b32 s24, s26, 6
        s_lshl_b32 s27, s{sAT}, 2
        s_lshl_b32 s25, s{sAI}, 1
        s_add_u32 s27, s27, s25
        s_and_b32 s25, s{sKQ}, 1
        s_add_u32 s27, s27, s25
        s_lshl_b32 s25, s26, 5
        s_add_u32 s25, s25, s27
        s_lshl_b32 s25, s25, 10
        s_add_u32 s25, s25, {WS_XB}""")
        NE = 2
    a("s_waitcnt lgkmcnt(0)")
    def slot_of(c): return P['slot0'] + (c % D)
    def loads(c):
        f = af + 8*(c % D)
        a(f"""s_add_u32 m0, s{sM}, {slot_of(c)*16384}
        buffer_load_dwordx4 {vr(f,4)}, v{vOff}, s[12:15], s{sOA} offen
        buffer_load_dwordx4 v{vOW0}, s[8:11], s{sOW} offen lds
        buffer_load_dwordx4 v{vOW1}, s[8:11], s{sOW} offen offset:1024 lds
        buffer_load_dwordx4 {vr(f+4,4)}, v{vOff}, s[12:15], s{sOA} offen offset:1024
        s_add_u32 s{sOW}, s{sOW}, {128*RS}
        s_add_u32 s{sOA}, s{sOA}, 8192""")
    loads(0)
    if kind in ("wo", "w1"):
        a(f"buffer_load_dwordx2 {vr(vE,2)}, v{vT0}, s[4:7], s24 offen")
        a(f"buffer_load_dwordx2 {vr(vE+2,2)}, v{vT0}, s[4:7], s24 offen offset:16")
    else:
        a(f"buffer_load_ushort v{vE+4}, v{vT0}, s[4:7], s24 offen")
        a(f"buffer_load_dwordx4 {vr(vE,4)}, v{vOff}, s[12:15], s25 offen")
    for c in range(1, min(D, NK)): loads(c)
    a(f"""v_lshrrev_b32 v{vT0}, 5, v{vL}
    v_lshlrev_b32 v{vT0}, 9, v{vT0}
    v_bfe_u32 v{vT1}, v{vL}, 2, 2
    v_lshl_add_u32 v{vT0}, v{vT1}, 7, v{vT0}
    v_and_b32 v{vT1}, 3, v{vL}
    v_lshl_add_u32 v{vT0}, v{vT1}, 3, v{vT0}
    v_bfe_u32 v{vT1}, v{vL}, 4, 1
    v_lshl_add_u32 v{vT0}, v{vT1}, 5, v{vT0}
    v_bfe_u32 v{vT1}, v{vL}, 3, 1
    v_lshl_add_u32 v{vT0}, v{vT1}, 6, v{vT0}
    s_lshl_b32 s28, s{sKQ}, 12
    v_add_u32 v{vAW[0]}, s28, v{vT0}
    v_xor_b32 v{vAW[1]}, 64, v{vAW[0]}
    v_add_u32 v{vAW[2]}, 0x10000, v{vAW[0]}
    v_add_u32 v{vAW[3]}, 0x10000, v{vAW[1]}""")
    for i in range(32): a(f"v_mov_b32 v{acc+i}, 0")
    if kind == "wo":
        a(f"""v_and_b32 v{vT0}, 31, v{vL}
        v_lshrrev_b32 v{vT1}, 5, v{vL}
        v_lshlrev_b32 v{vT1}, 2, v{vT1}
        v_sub_u32 v{vT0}, v{vT0}, v{vT1}
        s_and_b32 s28, s{sKQ}, 1
        s_lshl_b32 s28, s28, 4
        v_subrev_u32 v{vT0}, s28, v{vT0}
        v_mov_b32 v{vT1}, 0x3f80
        v_mov_b32 v{vT2}, 0x3f800000""")
        for m, pv_ in enumerate((0, 2, 8, 10)):
            a(f"""v_cmp_eq_u32 vcc, {pv_}, v{vT0}
            s_nop 1
            v_cndmask_b32 v{vE+4+m}, 0, v{vT1}, vcc
            v_cmp_eq_u32 vcc, {pv_+1}, v{vT0}
            s_nop 1
            v_cndmask_b32 v{vE+4+m}, v{vE+4+m}, v{vT2}, vcc""")
    for c in range(NK):
        last = min(D-1, NK-1) if c == 0 else min(c+D-2, NK-1)
        n = 4*(last-c) + (NE if c == 0 else 0)
        a(f"s_waitcnt vmcnt({n})\ns_barrier")
        if c >= 1 and c+D-1 < NK: loads(c+D-1)
        so = slot_of(c)*16384
        hb, so = so >> 16, so & 0xffff
        for t in range(2):
            for wi in range(2):
                f = wf + 8*t + 4*wi
                a(f"ds_read_b64_tr_b16 {vr(f,2)}, v{vAW[2*hb+wi]} offset:{so+t*2048}")
                a(f"ds_read_b64_tr_b16 {vr(f+2,2)}, v{vAW[2*hb+wi]} offset:{so+t*2048+1024}")
        for t in range(2):
            for wi in range(2):
                f = wf + 8*t + 4*wi
                x = af + 8*(c % D) + 4*t
                a(f"s_waitcnt lgkmcnt({6-4*t-2*wi})")
                A, B = (f, x) if P['worder'] == 'WA' else (x, f)
                a(f"v_mfma_f32_32x32x16_bf16 {vr(acc+16*wi,16)}, {vr(A,4)}, {vr(B,4)}, {vr(acc+16*wi,16)}")
    a(f"""s_lshl_b32 s28, s{sAI}, 15
    s_lshl_b32 s29, s{sKQ}, 11
    s_add_u32 s29, s29, s28
    v_add_u32 v{vT0}, s29, v{vOff}
    s_lshl_b32 s29, s{sKQ}, 13
    s_add_u32 s29, s29, s28
    v_add_u32 v{vT1}, s29, v{vOff}
    s_nop 7""")
    for q in range(4):
        a(f"ds_write_b128 v{vT0}, {vr(acc+8*q,4)} offset:{q*8192}")
        a(f"ds_write_b128 v{vT0}, {vr(acc+8*q+4,4)} offset:{q*8192+1024}")
    a("s_waitcnt lgkmcnt(0)\ns_barrier")
    for q in range(4):
        a(f"ds_read_b128 {vr(acc+8*q,4)}, v{vT1} offset:{q*2048}")
        a(f"ds_read_b128 {vr(acc+8*q+4,4)}, v{vT1} offset:{q*2048+1024}")
    for i in range(4):
        a(f"v_lshlrev_b32 v{wf+2*i}, 16, v{vE+i}\nv_and_b32 v{wf+2*i+1}, 0xffff0000, v{vE+i}")
    if kind == "w2":
        a(f"v_lshlrev_b32 v{vE+4}, 16, v{vE+4}")
        for i in range(8): a(f"v_add_f32 v{wf+i}, v{vE+4}, v{wf+i}")
    a("s_waitcnt lgkmcnt(4)")
    for i in range(8): a(f"v_add_f32 v{acc+i}, v{acc+i}, v{acc+8+i}")
    a("s_waitcnt lgkmcnt(0)")
    for i in range(8): a(f"v_add_f32 v{acc+16+i}, v{acc+16+i}, v{acc+24+i}")
    for i in range(8): a(f"v_add_f32 v{acc+i}, v{acc+i}, v{wf+i}")
    for i in range(8): a(f"v_add_f32 v{acc+i}, v{acc+i}, v{acc+16+i}")
    if kind == "w1":
        ga = -2*math.sqrt(2/math.pi)*math.log2(math.e); gb = ga*0.044715
        a(f"v_mov_b32 v{vT0}, {fhex(ga)}\ns_mov_b32 s28, {fhex(gb)}")
        for i in range(8): a(f"v_mul_f32 v{acc+8+i}, v{acc+i}, v{acc+i}")
        for i in range(8): a(f"v_fma_f32 v{acc+8+i}, v{acc+8+i}, s28, v{vT0}")
        for i in range(8): a(f"v_mul_f32 v{acc+8+i}, v{acc+8+i}, v{acc+i}")
        for i in range(8): a(f"v_exp_f32 v{acc+8+i}, v{acc+8+i}")
        for i in range(8): a(f"v_add_f32 v{acc+8+i}, 1.0, v{acc+8+i}")
        for i in range(8): a(f"v_rcp_f32 v{acc+8+i}, v{acc+8+i}")
        for i in range(8): a(f"v_mul_f32 v{acc+i}, v{acc+8+i}, v{acc+i}")
        for i in range(4): a(f"v_cvt_pk_bf16_f32 v{wf+i}, v{acc+2*i}, v{acc+2*i+1}")
        a(f"""s_lshl_b32 s24, s{sAT}, 1
        s_add_u32 s24, s24, s{sAI}
        s_mul_i32 s24, s24, 112
        s_lshl_b32 s25, s{sWT}, 2
        s_add_u32 s24, s24, s25
        s_add_u32 s24, s24, s{sKQ}
        s_lshl_b32 s24, s24, 10
        s_add_u32 s24, s24, {WS_UF}
        buffer_store_dwordx4 {vr(wf,4)}, v{vOff}, s[12:15], s24 offen""")
    elif kind == "w2":
        for i in range(4): a(f"v_cvt_pk_bf16_f32 v{wf+i}, v{acc+2*i}, v{acc+2*i+1}")
        a(f"""v_and_b32 v{vT0}, 31, v{vL}
        v_lshlrev_b32 v{vT0}, 10, v{vT0}
        v_lshrrev_b32 v{vT1}, 5, v{vL}
        v_lshl_add_u32 v{vT0}, v{vT1}, 4, v{vT0}
        v_permlane32_swap_b32 v{wf}, v{wf+2}
        v_permlane32_swap_b32 v{wf+1}, v{wf+3}
        s_lshl_b32 s24, s26, 15
        s_lshl_b32 s25, s27, 5
        s_add_u32 s24, s24, s25
        buffer_store_dwordx4 {vr(wf,4)}, v{vT0}, s[32:35], s24 offen""")
    else:
        vSx, vSy = wf+8, wf+9
        for i in range(4): a(f"v_cvt_pk_bf16_f32 v{wf+i}, v{acc+2*i}, v{acc+2*i+1}")
        a(f"v_mov_b32 v{vT2}, {ONES:#x}\nv_mov_b32 v{vSx}, 0\nv_mov_b32 v{vSy}, 0")
        a(f"""s_lshl_b32 s26, s{sAT}, 1
        s_add_u32 s26, s26, s{sAI}
        s_lshl_b32 s27, s{sWT}, 2
        s_add_u32 s27, s27, s{sKQ}
        s_lshl_b32 s24, s26, 5
        s_add_u32 s24, s24, s27""")
        for i in range(4):
            a(f"v_dot2_f32_bf16 v{vSx}, v{wf+i}, v{vT2}, v{vSx}")
            a(f"v_dot2_f32_bf16 v{vSy}, v{wf+i}, v{wf+i}, v{vSy}")
        a(f"""s_lshl_b32 s25, s24, 8
        s_add_u32 s25, s25, {WS_EX}
        s_lshl_b32 s24, s24, 10
        s_add_u32 s24, s24, {WS_XB}""")
        half_sum(a, vSx, vT0); half_sum(a, vSy, vT0)
        a(f"""v_mov_b32 v{vT1}, 0x7fc00000
        v_cmp_eq_u32 vcc, -1, v{vSx}
        v_and_b32 v{vT0}, 31, v{vL}
        v_lshlrev_b32 v{vT0}, 3, v{vT0}
        v_cndmask_b32 v{vSx}, v{vSx}, v{vT1}, vcc
        v_cmp_eq_u32 vcc, -1, v{vSy}
        s_mov_b32 exec_hi, 0
        s_nop 0
        v_cndmask_b32 v{vSy}, v{vSy}, v{vT1}, vcc
        s_nop 0
        buffer_store_dwordx2 {vr(vSx,2)}, v{vT0}, s[12:15], s25 offen sc1
        s_mov_b64 exec, -1
        buffer_store_dwordx4 {vr(wf,4)}, v{vOff}, s[12:15], s24 offen""")
        pl = acc + 16
        a(f"""v_lshrrev_b32 v{vT1}, 5, v{vL}
        v_lshl_add_u32 v{vT0}, v{vT1}, 10, v{vT0}
        s_lshl_b32 s25, s26, 13
        s_lshl_b32 s28, s{sKQ}, 11
        s_add_u32 s25, s25, s28
        s_add_u32 s25, s25, {WS_EX}
        s_mov_b32 s28, 0
        {L}_poll:""")
        for k in range(4):
            a(f"buffer_load_dwordx2 {vr(pl+2*k,2)}, v{vT0}, s[12:15], s25 offen offset:{k*256} sc1")
        a(f"""s_add_u32 s28, s28, 1
        s_waitcnt vmcnt(0)
        v_max3_u32 v{vT1}, v{pl}, v{pl+1}, v{pl+2}
        v_max3_u32 v{vT1}, v{pl+3}, v{pl+4}, v{vT1}
        v_max3_u32 v{vT1}, v{pl+5}, v{pl+6}, v{vT1}
        v_max_u32 v{vT1}, v{pl+7}, v{vT1}
        v_cmp_eq_u32 vcc, -1, v{vT1}
        s_cmp_ge_u32 s28, 0x40000
        s_cbranch_scc1 {L}_got
        s_cbranch_vccnz {L}_poll
        {L}_got:
        v_add_f32 v{pl}, v{pl}, v{pl+2}
        v_add_f32 v{pl+1}, v{pl+1}, v{pl+3}
        v_add_f32 v{pl+4}, v{pl+4}, v{pl+6}
        v_add_f32 v{pl+5}, v{pl+5}, v{pl+7}
        v_add_f32 v{vSx}, v{pl}, v{pl+4}
        v_add_f32 v{vSy}, v{pl+1}, v{pl+5}""")
        half_sum(a, vSx, vT1); half_sum(a, vSy, vT1)
        a(f"""v_and_b32 v{vT0}, 31, v{vL}
        v_lshlrev_b32 v{vT0}, 3, v{vT0}
        s_lshl_b32 s28, s{sAI}, 10
        s_add_u32 s28, s28, 0x10000
        v_add_u32 v{vT0}, s28, v{vT0}
        s_lshl_b32 s28, s{sKQ}, 8
        v_add_u32 v{vT1}, s28, v{vT0}
        ds_write_b64 v{vT1}, {vr(vSx,2)}
        s_waitcnt lgkmcnt(0)
        s_barrier""")
        for k in range(4): a(f"ds_read_b64 {vr(pl+2*k,2)}, v{vT0} offset:{k*256}")
        a(f"""s_waitcnt lgkmcnt(0)
        v_add_f32 v{pl}, v{pl}, v{pl+2}
        v_add_f32 v{pl+1}, v{pl+1}, v{pl+3}
        v_add_f32 v{pl+4}, v{pl+4}, v{pl+6}
        v_add_f32 v{pl+5}, v{pl+5}, v{pl+7}
        v_add_f32 v{vSx}, v{pl}, v{pl+4}
        v_add_f32 v{vSy}, v{pl+1}, v{pl+5}
        v_mul_f32 v{vSx}, {fhex(1/512)}, v{vSx}
        v_mul_f32 v{vSy}, {fhex(1/512)}, v{vSy}
        v_fma_f32 v{vSy}, -v{vSx}, v{vSx}, v{vSy}
        v_max_f32 v{vSy}, 0, v{vSy}
        v_add_f32 v{pl}, {fhex(EPS)}, v{vSy}
        v_rsq_f32 v{pl}, v{pl}
        s_nop 0
        v_mul_f32 v{pl+1}, v{pl}, v{pl}
        v_mul_f32 v{pl+1}, v{pl+1}, v{vSy}
        v_add_f32 v{pl+1}, {fhex(EPS)}, v{pl+1}
        v_rsq_f32 v{pl+1}, v{pl+1}
        s_nop 0
        v_mul_f32 v{pl}, v{pl}, v{pl+1}""")
        for i in range(8): a(f"v_sub_f32 v{acc+i}, v{acc+i}, v{vSx}")
        for i in range(8): a(f"v_mul_f32 v{acc+i}, v{acc+i}, v{pl}")
        for i in range(4): a(f"v_cvt_pk_bf16_f32 v{wf+4+i}, v{acc+2*i}, v{acc+2*i+1}")
        a(f"""s_lshr_b32 s24, s27, 1
        s_lshl_b32 s24, s24, 7
        v_mfma_f32_32x32x16_bf16 {vr(acc+16,16)}, {vr(wf+4,4)}, {vr(vE+4,4)}, 0
        s_lshl_b32 s25, s26, 1
        s_add_u32 s24, s24, s25
        s_lshl_b32 s24, s24, 10
        s_add_u32 s24, s24, {WS_HF}
        s_and_b32 s28, s{sKQ}, 1
        s_lshl_b32 s28, s28, 4
        s_lshl_b32 s28, 0xffff, s28
        s_mov_b32 s29, s28
        s_nop 7""")
        for i in range(8): a(f"v_cvt_pk_bf16_f32 v{acc+i}, v{acc+16+2*i}, v{acc+16+2*i+1}")
        a(f"""s_mov_b64 exec, s[28:29]
        buffer_store_dwordx4 {vr(acc,4)}, v{vOff}, s[12:15], s24 offen
        buffer_store_dwordx4 {vr(acc+4,4)}, v{vOff}, s[12:15], s24 offen offset:1024""")
    a(f"{L}_end:\ns_endpgm")
    if kind == "wo":
        kernels.append(("wo1_kernel", R.hi)); kernels.append(("wo2_kernel", R.hi))
        return 81920
    kernels.append((f"{kind}_kernel", R.hi))
    return 131072

def main(out):
    a = Asm()
    lq = gen_qkv(a); la = gen_attn(a)
    lwo = gen_gemm(a, "wo"); l1 = gen_gemm(a, "w1"); l2 = gen_gemm(a, "w2")
    hdr = open(f"cdna_kernels/{NAME}.s.ref").read().split("; Override launch")[0]
    seq = [("qkv1", 256, lq), ("attn", 256, la), ("wo1", 256, lwo), ("w1", 224, l1), ("w2", 256, l2),
           ("qkv2", 256, lq), ("attn", 256, la), ("wo2", 256, lwo), ("w1", 224, l1), ("w2", 256, l2)]
    for k, g, l in seq:
        hdr += f"; @launch kernel={k}_kernel grid=({g},1,1) block=(512,1,1) lds={l}\n"
    txt = hdr + '.amdgcn_target "amdgcn-amd-amdhsa--gfx950"\n.text\n' + a.text()
    txt += '.section .rodata,"a"\n'
    for k, nv in kernels:
        acc = (nv + 3)//4*4
        txt += f""".p2align 6
.amdhsa_kernel {k}
  .amdhsa_next_free_vgpr {acc}
  .amdhsa_next_free_sgpr 48
  .amdhsa_accum_offset {acc}
  .amdhsa_group_segment_fixed_size 0
  .amdhsa_kernarg_size 88
  .amdhsa_user_sgpr_count 2
  .amdhsa_user_sgpr_kernarg_segment_ptr 1
  .amdhsa_system_sgpr_workgroup_id_x 1
  .amdhsa_float_denorm_mode_32 3
.end_amdhsa_kernel
"""
    open(out, "w").write(txt)
    print(kernels)

if __name__ == "__main__":
    main(sys.argv[1] if len(sys.argv) > 1 else f"cdna_kernels/{NAME}.s")
```

```python
import math, sys
from asmlib import *

NAME = "interleave_layers__softmax_full_mha__mixer_token_mlp__prompt"
KA_X, KA_WQKV, KA_WO, KA_W1, KA_B1, KA_W2, KA_B2, KA_OUT, KA_DBG, KA_WS = 0, 8, 16, 32, 40, 48, 56, 64, 72, 80
WS_QF = 0x000000
WS_KV = 0x200000
WS_OF = 0x600000
WS_XF = 0x800000
WS_HF = 0xA00000
WS_UF = 0xC00000
WS_EX = 0xE00000
WS_S2 = 0xE80000
WS_FL = 0xF00000
WS_CP = 0xF40000
WS_ST = 0xF80000
LSTR = 0x1000000
WS_SIZE = 0x2000000
FL_O, FL_H, FL_U, FL_X, FL_Q = [WS_FL + i*0x8000 for i in range(5)]
EPS = 1e-5
QSCALE = 0.25 * math.log2(math.e)
ONES = 0x3F803F80
STAMP = False
SPIN = 0x10000

kernels = []

def kstart(a, name):
    a(f".globl {name}\n.p2align 8\n.type {name},@function\n{name}:")

def srd(a, s, size):
    a(f"s_mov_b32 s{s+2}, {size:#x}\ns_mov_b32 s{s+3}, 0x20000")

def half_sum(a, x, t):
    a(f"v_mov_b32 v{t}, v{x}\ns_nop 1\nv_permlane32_swap_b32 v{x}, v{t}\ns_nop 1\nv_add_f32 v{x}, v{x}, v{t}")

class VM:
    def __init__(self, a): self.a = a; self.ops = []
    def add(self, tag, n=1): self.ops += [tag]*n
    def wait(self, tags):
        last = max((i for i, t in enumerate(self.ops) if t in tags), default=-1)
        n = len(self.ops) - 1 - last
        assert n < 64
        self.a(f"s_waitcnt vmcnt({n})")

def qkv_store_setup(a, sCG, sCH, sRB, sSI, sLO):
    a(f"""s_lshl_b32 s24, s{sCG}, 2
    s_lshl_b32 s25, s{sCH}, 1
    s_add_u32 s24, s24, s25
    s_lshl_b32 s24, s24, 6
    s_lshl_b32 s25, s{sRB}, 1
    s_add_u32 s25, s25, s{sSI}
    s_add_u32 s24, s24, s25
    s_lshl_b32 s26, s24, 10
    s_add_u32 s26, s26, {WS_QF + sLO}
    s_add_u32 s27, s26, {64*1024}
    s_lshl_b32 s28, s24, 11
    s_add_u32 s28, s28, {WS_KV + sLO}
    s_add_u32 s29, s28, {64*2048}""")

def k_lane_off(a, d, vL, t):
    a(f"""v_and_b32 v{d}, 0x33, v{vL}
    v_bfe_u32 v{t}, v{vL}, 2, 1
    v_lshl_add_u32 v{d}, v{t}, 3, v{d}
    v_bfe_u32 v{t}, v{vL}, 3, 1
    v_lshl_add_u32 v{d}, v{t}, 2, v{d}
    v_lshlrev_b32 v{d}, 4, v{d}""")

def v_lane_off(a, d, vL, t):
    a(f"""v_and_b32 v{d}, 15, v{vL}
    v_lshlrev_b32 v{d}, 4, v{d}
    v_lshrrev_b32 v{t}, 5, v{vL}
    v_lshl_add_u32 v{d}, v{t}, 8, v{d}
    v_bfe_u32 v{t}, v{vL}, 4, 1
    v_lshl_add_u32 v{d}, v{t}, 17, v{d}""")

def gen_ka(a):
    kstart(a, "qkv1_kernel")
    if STAMP: a("s_memrealtime s[40:41]\ns_memtime s[42:43]")
    a(f"""s_load_dwordx2 s[4:5], s[0:1], {KA_X}
    s_load_dwordx2 s[8:9], s[0:1], {KA_WQKV}
    s_load_dwordx2 s[12:13], s[0:1], {KA_WS}
    s_cmp_ge_u32 s2, 256
    s_cbranch_scc1 L_ka_end""")
    R = Regs(1)
    vL, vT0, vT1, vT2, vT3 = [R.get() for _ in range(5)]
    vOX, vOW, vWX = R.get(), R.get(), R.get()
    vAX = [R.get() for _ in range(4)]
    vAW = [R.get() for _ in range(2)]
    vSx, vSy = R.get(2), None
    vSy = vSx + 1
    acc0 = R.get(16, 4); acc1 = R.get(16, 4)
    fr = R.get(48, 4)
    X = R.get(32, 4)
    CPR = R.get(8, 2)
    sW, sCG, sRB, sSI, sCH, sOX, sOW, sM = 16, 17, 18, 19, 20, 21, 22, 23
    XL = 98304
    a(f"""v_lshrrev_b32 v{vT0}, 6, v0
    v_and_b32 v{vL}, 63, v0
    s_and_b32 s24, s2, 7
    v_readfirstlane_b32 s{sW}, v{vT0}
    s_lshl_b32 s24, s24, 2
    s_bfe_u32 s{sRB}, s2, 0x20003
    s_add_u32 s{sRB}, s{sRB}, s24
    s_lshr_b32 s{sCG}, s2, 5""")
    srd(a, 4, 2048*512*2); srd(a, 8, 512*1536*2); srd(a, 12, WS_SIZE)
    a(f"""v_lshrrev_b32 v{vT0}, 3, v0
    v_and_b32 v{vT2}, 7, v0
    v_lshlrev_b32 v{vT3}, 4, v{vT2}
    v_lshl_add_u32 v{vOX}, v{vT0}, 10, v{vT3}
    v_bfe_u32 v{vT1}, v0, 4, 1
    v_lshlrev_b32 v{vT1}, 6, v{vT1}
    v_xor_b32 v{vT1}, v{vT1}, v{vT3}
    v_mul_u32_u24 v{vOW}, 3072, v{vT0}
    v_add_u32 v{vOW}, v{vOW}, v{vT1}
    s_lshl_b32 s{sOX}, s{sRB}, 16
    s_lshl_b32 s{sOW}, s{sCG}, 7
    s_mul_i32 s{sM}, s{sW}, 3072
    s_waitcnt lgkmcnt(0)""")
    vm = VM(a)
    for i in range(8):
        a(f"buffer_load_dwordx4 {vr(X+4*i,4)}, v{vOX}, s[4:7], s{sOX} offen offset:{128*i}")
    vm.add('x', 8)
    def dma(c):
        a(f"""s_add_u32 m0, s{sM}, {(c % 4)*24576}
        s_nop 0
        buffer_load_dwordx4 v{vOW}, s[8:11], s{sOW} offen lds
        buffer_load_dwordx4 v{vOW}, s[8:11], s{sOW} offen offset:1024 lds
        buffer_load_dwordx4 v{vOW}, s[8:11], s{sOW} offen offset:2048 lds
        s_add_u32 s{sOW}, s{sOW}, {64*3072}""")
        vm.add(('w', c), 3)
    dma(0); dma(1)
    a(f"""v_bfe_u32 v{vT1}, v0, 4, 3
    v_xor_b32 v{vT1}, v{vT1}, v{vT2}
    v_lshlrev_b32 v{vT1}, 4, v{vT1}
    v_lshl_add_u32 v{vWX}, v{vT0}, 7, v{vT1}
    v_add_u32 v{vWX}, {XL}, v{vWX}
    s_and_b32 s{sSI}, s{sW}, 1
    s_bfe_u32 s{sCH}, s{sW}, 0x10001
    v_and_b32 v{vT0}, 31, v{vL}
    v_lshlrev_b32 v{vT1}, 7, v{vT0}
    s_lshl_b32 s24, s{sSI}, 12
    s_add_u32 s24, s24, {XL}
    v_add_u32 v{vT1}, s24, v{vT1}
    v_bfe_u32 v{vT0}, v{vL}, 1, 3
    v_lshrrev_b32 v{vT2}, 5, v{vL}
    v_xor_b32 v{vT0}, v{vT0}, v{vT2}""")
    for t in range(4):
        a(f"""v_xor_b32 v{vT2}, {2*t}, v{vT0}
        v_lshl_add_u32 v{vAX[t]}, v{vT2}, 4, v{vT1}""")
    a(f"""v_lshrrev_b32 v{vT0}, 5, v{vL}
    v_mul_u32_u24 v{vT0}, 3072, v{vT0}
    v_bfe_u32 v{vT1}, v{vL}, 2, 2
    v_lshl_add_u32 v{vT0}, v{vT1}, 7, v{vT0}
    v_and_b32 v{vT1}, 3, v{vL}
    v_lshl_add_u32 v{vT0}, v{vT1}, 3, v{vT0}
    v_bfe_u32 v{vT1}, v{vL}, 4, 1
    v_lshl_add_u32 v{vT0}, v{vT1}, 5, v{vT0}
    v_bfe_u32 v{vT1}, v{vL}, 3, 1
    v_xor_b32 v{vT1}, s{sCH}, v{vT1}
    v_lshl_add_u32 v{vAW[0]}, v{vT1}, 6, v{vT0}
    v_add_u32 v{vAW[1]}, 49152, v{vAW[0]}
    v_mov_b32 v{vT3}, {ONES:#x}
    v_mov_b32 v{vSx}, 0
    v_mov_b32 v{vSy}, 0""")
    for i in range(16): a(f"v_mov_b32 v{acc0+i}, 0\nv_mov_b32 v{acc1+i}, 0")
    dma(2); dma(3)
    vm.wait({'x'})
    for i in range(32):
        a(f"v_dot2_f32_bf16 v{vSx}, v{X+i}, v{vT3}, v{vSx}")
        a(f"v_dot2_f32_bf16 v{vSy}, v{X+i}, v{X+i}, v{vSy}")
    a("s_nop 2")
    for ctl in ("quad_perm:[1,0,3,2]", "quad_perm:[2,3,0,1]", "row_half_mirror"):
        a(f"""v_add_f32_dpp v{vSx}, v{vSx}, v{vSx} {ctl} row_mask:0xf bank_mask:0xf
        v_add_f32_dpp v{vSy}, v{vSy}, v{vSy} {ctl} row_mask:0xf bank_mask:0xf
        s_nop 1""")
    a(f"""v_mul_f32 v{vSx}, {fhex(1/512)}, v{vSx}
    v_mul_f32 v{vSy}, {fhex(1/512)}, v{vSy}
    v_fma_f32 v{vSy}, -v{vSx}, v{vSx}, v{vSy}
    v_max_f32 v{vSy}, 0, v{vSy}
    v_add_f32 v{vSy}, {fhex(EPS)}, v{vSy}
    v_rsq_f32 v{vSy}, v{vSy}
    s_nop 0
    v_mul_f32 v{vSx}, v{vSx}, v{vSy}""")
    for i in range(8):
        for j in range(4):
            t = fr + 2*j
            a(f"""v_lshlrev_b32 v{t}, 16, v{X+4*i+j}
            v_and_b32 v{t+1}, 0xffff0000, v{X+4*i+j}""")
        for j in range(4):
            t = fr + 2*j
            a(f"v_pk_fma_f32 {vr(t,2)}, {vr(t,2)}, {vr(vSx,2)}, {vr(vSx,2)} op_sel:[0,1,0] op_sel_hi:[1,1,0] neg_lo:[0,0,1] neg_hi:[0,0,1]")
        for j in range(4):
            t = fr + 2*j
            a(f"v_cvt_pk_bf16_f32 v{X+4*i+j}, v{t}, v{t+1}")
        a(f"ds_write_b128 v{vWX}, {vr(X+4*i,4)} offset:{i*8192}")
    a("s_waitcnt lgkmcnt(0)")
    if STAMP: a("s_memtime s[48:49]\ns_waitcnt lgkmcnt(0)")
    a(f"s_cmp_ge_u32 s{sW}, 4\ns_cbranch_scc1 L_ka_vwave")
    ops0 = list(vm.ops)
    def head(c):
        vm.wait({('w', c)}); a("s_barrier")
        if 1 <= c and c+3 < 8: dma(c+3)
    def woff(c):
        s = c % 4
        return s >> 1, (s & 1)*24576
    def tail():
        a(f"""v_mov_b32 v{vT1}, -1
        v_lshlrev_b32 v{vT0}, 2, v0
        s_lshl_b32 s24, s2, 11
        s_add_u32 s24, s24, {WS_EX}
        buffer_store_dword v{vT1}, v{vT0}, s[12:15], s24 offen
        s_add_u32 s24, s24, {LSTR}
        buffer_store_dword v{vT1}, v{vT0}, s[12:15], s24 offen""")
    for c in range(8):
        head(c)
        hb, so = woff(c)
        def rd(t):
            f = fr + 12*t
            a(f"ds_read_b128 {vr(f,4)}, v{vAX[t]} offset:{c*8192}")
            for g in range(2):
                a(f"ds_read_b64_tr_b16 {vr(f+4+4*g,2)}, v{vAW[hb]} offset:{so+t*6144+g*1024}")
                a(f"ds_read_b64_tr_b16 {vr(f+6+4*g,2)}, v{vAW[hb]} offset:{so+t*6144+g*1024+512}")
        def cp(t):
            f = fr + 12*t
            a(f"v_mfma_f32_32x32x16_bf16 {vr(acc0,16)}, {vr(f+4,4)}, {vr(f,4)}, {vr(acc0,16)}")
            a(f"v_mfma_f32_32x32x16_bf16 {vr(acc1,16)}, {vr(f+8,4)}, {vr(f,4)}, {vr(acc1,16)}")
        rd(0); rd(1); rd(2)
        a("s_waitcnt lgkmcnt(10)"); cp(0); rd(3)
        a("s_waitcnt lgkmcnt(10)"); cp(1)
        a("s_waitcnt lgkmcnt(5)"); cp(2)
        a("s_waitcnt lgkmcnt(0)"); cp(3)
    if STAMP: a("s_memtime s[50:51]")
    qkv_store_setup(a, sCG, sCH, sRB, sSI, 0)
    a(f"v_lshlrev_b32 v{vOX}, 4, v{vL}")
    k_lane_off(a, vOW, vL, vT1)
    for i in range(16): a(f"v_mul_f32 v{acc0+i}, {fhex(QSCALE)}, v{acc0+i}")
    for g, acc in enumerate((acc0, acc1)):
        for i in range(8):
            a(f"v_cvt_pk_bf16_f32 v{fr+16*g+i}, v{acc+2*i}, v{acc+2*i+1}")
        vo = vOX if g == 0 else vOW
        a(f"buffer_store_dwordx4 {vr(fr+16*g,4)}, v{vo}, s[12:15], s{26+2*g} offen")
        a(f"buffer_store_dwordx4 {vr(fr+16*g+4,4)}, v{vo}, s[12:15], s{27+2*g} offen")
    tail()
    stamp_end(a, sW, 0)
    a("s_endpgm")
    a("L_ka_vwave:")
    vm.ops = list(ops0)
    for c in range(8):
        head(c)
        hb, so = woff(c)
        for t in range(4):
            f = fr + 8*t
            a(f"ds_read_b128 {vr(f,4)}, v{vAX[t]} offset:{c*8192}")
            a(f"ds_read_b64_tr_b16 {vr(f+4,2)}, v{vAW[hb]} offset:{so+t*6144+2048}")
            a(f"ds_read_b64_tr_b16 {vr(f+6,2)}, v{vAW[hb]} offset:{so+t*6144+2048+512}")
        if c == 5:
            a(f"""s_sub_u32 s30, s{sW}, 4
            s_min_u32 s30, s30, 2
            s_mul_i32 s31, s{sRB}, {16*3072}
            s_lshl_b32 s24, s30, 10
            s_add_u32 s31, s31, s24
            s_lshl_b32 s24, s{sCG}, 7
            s_add_u32 s31, s31, s24
            v_lshrrev_b32 v{vT0}, 5, v{vL}
            v_mul_u32_u24 v{vT0}, {8*3072}, v{vT0}
            v_and_b32 v{vT1}, 31, v{vL}
            v_lshl_add_u32 v{vT0}, v{vT1}, 2, v{vT0}""")
            for i in range(8):
                a(f"buffer_load_dword v{CPR+i}, v{vT0}, s[8:11], s31 offen\ns_add_u32 s31, s31, 3072")
            vm.add('cp', 8)
        for t in range(4):
            f = fr + 8*t
            a(f"s_waitcnt lgkmcnt({9-3*t})")
            a(f"v_mfma_f32_32x32x16_bf16 {vr(acc0,16)}, {vr(f,4)}, {vr(f+4,4)}, {vr(acc0,16)}")
    if STAMP: a("s_memtime s[50:51]")
    qkv_store_setup(a, sCG, sCH, sRB, sSI, 0)
    v_lane_off(a, vOX, vL, vT1)
    for i in range(8):
        a(f"v_cvt_pk_bf16_f32 v{fr+32+i}, v{acc0+2*i}, v{acc0+2*i+1}")
    a(f"buffer_store_dwordx4 {vr(fr+32,4)}, v{vOX}, s[12:15], s28 offen offset:1024")
    a(f"buffer_store_dwordx4 {vr(fr+36,4)}, v{vOX}, s[12:15], s28 offen offset:1536")
    a("s_waitcnt vmcnt(2)")
    a(f"v_mov_b32 v{vSx}, 0\nv_mov_b32 v{vSy}, 0")
    for i in range(8):
        a(f"""v_lshlrev_b32 v{vT0}, 16, v{CPR+i}
        v_and_b32 v{vT1}, 0xffff0000, v{CPR+i}
        v_add_f32 v{vSx}, v{vSx}, v{vT0}
        v_add_f32 v{vSy}, v{vSy}, v{vT1}""")
    half_sum(a, vSx, vT0); half_sum(a, vSy, vT0)
    a(f"""s_mul_i32 s31, s{sRB}, 6144
    s_lshl_b32 s24, s30, 11
    s_add_u32 s31, s31, s24
    s_lshl_b32 s24, s{sCG}, 8
    s_add_u32 s31, s31, s24
    s_add_u32 s31, s31, {WS_CP}
    v_and_b32 v{vT1}, 31, v{vL}
    v_lshlrev_b32 v{vT1}, 3, v{vT1}
    buffer_store_dwordx2 {vr(vSx,2)}, v{vT1}, s[12:15], s31 offen""")
    a(f"""v_and_b32 v{vT0}, 7, v{vL}
    v_lshlrev_b32 v{vT0}, 15, v{vT0}
    v_bfe_u32 v{vT1}, v{vL}, 3, 1
    v_lshl_add_u32 v{vT0}, v{vT1}, 24, v{vT0}
    v_mov_b32 v{vT2}, 0
    s_lshl_b32 s24, s2, 7
    s_add_u32 s24, s24, {WS_FL}
    buffer_store_dword v{vT2}, v{vT0}, s[12:15], s24 offen""")
    tail()
    stamp_end(a, sW, 0)
    a("L_ka_end:\ns_endpgm")
    kernels.append(("qkv1_kernel", R.hi))
    return 163840

def stamp_end(a, sW, slot):
    if not STAMP: return
    a(f"""s_waitcnt vmcnt(0)
    s_memrealtime s[44:45]
    s_memtime s[46:47]
    s_waitcnt lgkmcnt(0)
    s_lshl_b32 s36, s2, 3
    s_add_u32 s36, s36, s{sW}
    s_lshl_b32 s36, s36, 8
    s_add_u32 s36, s36, {WS_ST + LSTR}
    s_sub_u32 s46, s46, s42
    s_sub_u32 s48, s48, s42
    s_sub_u32 s50, s50, s42
    v_mov_b32 v4, s40
    v_mov_b32 v5, s44
    v_mov_b32 v6, s46
    v_mov_b32 v7, s48
    v_mov_b32 v8, s50
    v_mov_b32 v1, 0
    s_mov_b64 exec, 1
    buffer_store_dwordx4 v[4:7], v1, s[12:15], s36 offen
    buffer_store_dword v8, v1, s[12:15], s36 offen offset:16""")

S_WQ, S_WO, S_WS, S_W1, S_W2, S_B1, S_B2, S_X, S_OUT = 4, 8, 12, 48, 52, 56, 60, 64, 68
sW, sJ, sMm, sLO, sRB, sCT, sAI, sKQ, sOA, sOW, sMB, sKC = 16, 17, 18, 19, 20, 21, 22, 23, 32, 33, 34, 35
sDT, sFT = 36, 37
sST = 38
TAB = 159744
T_C, T_MU, T_ST = TAB, TAB+1024, TAB+2048

class KB:
    def __init__(self, a):
        self.a = a
        R = self.R = Regs(1)
        self.vL, self.vOff, self.vRow, self.vSw = [R.get() for _ in range(4)]
        self.vT = [R.get() for _ in range(4)]
        self.vOW0, self.vOW1 = R.get(), R.get()
        self.vAW = [R.get() for _ in range(6)]
        self.vTr = R.get()
        self.vStamp = R.get()
        self.vRes = R.get(8, 4)
        self.vId = R.get(4, 4)
        self.vE = R.get(8, 4)
        self.base = R.n
        self.nmark = 0

    def alloc(self):
        r = Regs(self.base)
        return r
    def done(self, r):
        self.R.hi = max(self.R.hi, r.hi)

    def mark(self):
        if not STAMP: return
        a = self.a
        a(f"""s_memtime s[44:45]
        s_waitcnt lgkmcnt(0)
        s_sub_u32 s44, s44, s42
        s_mov_b32 m0, s{sST}
        s_add_u32 s{sST}, s{sST}, 1
        v_writelane_b32 v{self.vStamp}, s44, m0""")

    def wsetup(self, RS):
        a = self.a
        a(f"""v_mul_u32_u24 v{self.vOW0}, {RS}, v{self.vRow}
        v_add_u32 v{self.vOW0}, v{self.vOW0}, v{self.vSw}
        v_add_u32 v{self.vOW1}, {8*RS-1024}, v{self.vOW0}""")

    def prefetch_chunks(self, srdW, RS, scol, first_chunk, slots, w0, NK, srot=None):
        a = self.a
        L = a.label("pf")
        n = len(slots)
        assert slots == list(range(slots[0], slots[0]+n)) and w0 + n <= 8
        self.wsetup(RS)
        a(f"""s_sub_u32 s24, s{sW}, {w0}
        s_cmp_ge_u32 s24, {n}
        s_cbranch_scc1 {L}
        s_add_u32 s25, s24, {slots[0]}
        s_lshl_b32 s25, s25, 14
        s_add_u32 s24, s24, {first_chunk}
        s_mul_i32 s24, s24, {128*RS}
        s_lshl_b32 s26, s{scol}, 7
        s_add_u32 s24, s24, s26""")
        for i in range(8):
            a(f"""s_add_u32 m0, s25, {i*2048}
            s_nop 0
            buffer_load_dwordx4 v{self.vOW0}, {sr(srdW,4)}, s24 offen lds
            buffer_load_dwordx4 v{self.vOW1}, {sr(srdW,4)}, s24 offen offset:1024 lds
            s_add_u32 s24, s24, {16*RS}""")
        a(f"{L}:")

    def signal_wait(self, flag_off_s, poll_off_s, npoll, prefetch=None):
        a = self.a; T = self.vT
        L = a.label("sw")
        a("s_waitcnt vmcnt(0)\ns_barrier")
        if flag_off_s is not None:
            a(f"""s_cmp_lg_u32 s{sW}, 0
            s_cbranch_scc1 {L}_ns
            v_mov_b32 v{T[0]}, 1
            v_mov_b32 v{T[1]}, 0
            s_mov_b64 exec, 1
            buffer_store_dword v{T[0]}, v{T[1]}, s[12:15], s{flag_off_s} offen sc1
            s_mov_b64 exec, -1
            {L}_ns:""")
        self.mark()
        if prefetch: prefetch()
        a(f"""s_cmp_lg_u32 s{sW}, 1
        s_cbranch_scc1 {L}_go
        v_min_u32 v{T[1]}, {npoll-1}, v{self.vL}
        v_lshlrev_b32 v{T[1]}, 7, v{T[1]}
        s_mov_b32 s24, 0
        {L}_poll:
        buffer_load_dword v{T[0]}, v{T[1]}, s[12:15], s{poll_off_s} offen sc1
        s_add_u32 s24, s24, 1
        s_waitcnt vmcnt(0)
        v_cmp_eq_u32 vcc, 0, v{T[0]}
        s_cmp_ge_u32 s24, {SPIN}
        s_cbranch_scc1 {L}_go
        s_cbranch_vccnz {L}_poll
        {L}_go:
        s_barrier""")
        self.mark()

    def prologue(self):
        a = self.a; T = self.vT; vL = self.vL
        kstart(a, "main_kernel")
        if STAMP: a(f"s_memrealtime s[40:41]\ns_memtime s[42:43]\ns_mov_b32 s{sST}, 3")
        a(f"""s_load_dwordx2 s[12:13], s[0:1], {KA_WS}
        s_load_dwordx2 s[{S_X}:{S_X+1}], s[0:1], {KA_X}
        s_load_dwordx2 s[{S_WQ}:{S_WQ+1}], s[0:1], {KA_WQKV}
        s_load_dwordx2 s[{S_WO}:{S_WO+1}], s[0:1], {KA_WO}
        s_load_dwordx2 s[{S_W1}:{S_W1+1}], s[0:1], {KA_W1}
        s_load_dwordx2 s[{S_B1}:{S_B1+1}], s[0:1], {KA_B1}
        s_load_dwordx2 s[{S_W2}:{S_W2+1}], s[0:1], {KA_W2}
        s_load_dwordx2 s[{S_B2}:{S_B2+1}], s[0:1], {KA_B2}
        s_load_dwordx2 s[{S_OUT}:{S_OUT+1}], s[0:1], {KA_OUT}
        s_cmp_ge_u32 s2, 256
        s_cbranch_scc1 L_kb_end
        v_lshrrev_b32 v{T[0]}, 6, v0
        v_and_b32 v{vL}, 63, v0
        s_and_b32 s{sJ}, s2, 7
        v_readfirstlane_b32 s{sW}, v{T[0]}
        s_lshr_b32 s{sMm}, s2, 3
        v_lshlrev_b32 v{self.vOff}, 4, v{vL}
        s_mov_b32 s{sLO}, 0
        v_mov_b32 v{self.vStamp}, 0""")
        srd(a, S_WS, WS_SIZE); srd(a, S_X, 2048*512*2); srd(a, S_WQ, 512*1536*2); srd(a, S_WO, 512*512*2)
        srd(a, S_W1, 2048*1792*2); srd(a, S_B1, 1792*2); srd(a, S_W2, 1792*2048*2); srd(a, S_B2, 2048*2); srd(a, S_OUT, 2048*512*2)
        a(f"""s_lshl_b32 s{sRB}, s{sJ}, 2
        s_and_b32 s24, s{sMm}, 3
        s_add_u32 s{sRB}, s{sRB}, s24
        s_lshr_b32 s{sCT}, s{sMm}, 2
        s_and_b32 s25, s{sJ}, 1
        s_lshl_b32 s25, s25, 2
        s_add_u32 s{sDT}, s25, s24
        s_lshr_b32 s25, s{sJ}, 1
        s_mul_i32 s25, s25, 7
        s_add_u32 s{sFT}, s25, s{sCT}
        s_waitcnt lgkmcnt(0)""")

    def setup_consts(self):
        a = self.a; T = self.vT; vL = self.vL
        a(f"""v_lshrrev_b32 v{self.vRow}, 3, v{vL}
        v_bfe_u32 v{T[1]}, v{vL}, 4, 1
        v_lshlrev_b32 v{T[1]}, 2, v{T[1]}
        v_xor_b32 v{T[1]}, v{T[1]}, v{vL}
        v_and_b32 v{T[1]}, 7, v{T[1]}
        v_lshlrev_b32 v{self.vSw}, 4, v{T[1]}
        v_bfe_u32 v{T[1]}, v{vL}, 2, 2
        v_lshlrev_b32 v{T[0]}, 7, v{T[1]}
        v_and_b32 v{T[1]}, 3, v{vL}
        v_lshl_add_u32 v{T[0]}, v{T[1]}, 3, v{T[0]}
        v_bfe_u32 v{T[1]}, v{vL}, 4, 1
        v_lshl_add_u32 v{T[0]}, v{T[1]}, 5, v{T[0]}
        v_bfe_u32 v{T[1]}, v{vL}, 3, 1
        v_lshl_add_u32 v{T[0]}, v{T[1]}, 6, v{T[0]}
        v_lshrrev_b32 v{T[1]}, 5, v{vL}
        v_lshl_add_u32 v{self.vTr}, v{T[1]}, 9, v{T[0]}
        s_and_b32 s{sAI}, s{sW}, 1
        s_lshr_b32 s{sKQ}, s{sW}, 1
        s_lshl_b32 s24, s{sKQ}, 12
        v_add_u32 v{self.vAW[0]}, s24, v{self.vTr}
        v_xor_b32 v{self.vAW[1]}, 64, v{self.vAW[0]}""")
        for b in (1, 2):
            for wi in range(2):
                a(f"v_add_u32 v{self.vAW[2*b+wi]}, {b*65536}, v{self.vAW[wi]}")
        a(f"""v_and_b32 v{T[0]}, 31, v{vL}
        v_lshrrev_b32 v{T[1]}, 5, v{vL}
        v_lshlrev_b32 v{T[1]}, 2, v{T[1]}
        v_sub_u32 v{T[0]}, v{T[0]}, v{T[1]}
        s_and_b32 s24, s{sKQ}, 1
        s_lshl_b32 s24, s24, 4
        v_subrev_u32 v{T[0]}, s24, v{T[0]}
        v_mov_b32 v{T[1]}, 0x3f80
        v_mov_b32 v{T[2]}, 0x3f800000""")
        for m, pv_ in enumerate((0, 2, 8, 10)):
            a(f"""v_cmp_eq_u32 vcc, {pv_}, v{T[0]}
            s_nop 1
            v_cndmask_b32 v{self.vId+m}, 0, v{T[1]}, vcc
            v_cmp_eq_u32 vcc, {pv_+1}, v{T[0]}
            s_nop 1
            v_cndmask_b32 v{self.vId+m}, v{self.vId+m}, v{T[2]}, vcc""")

    def first_layer_extras(self, r):
        a = self.a; T = self.vT; vL = self.vL
        tmp = r.get(32, 4)
        L = a.label("fx")
        a(f"""v_and_b32 v{T[0]}, 31, v{vL}
        v_lshlrev_b32 v{T[2]}, 10, v{T[0]}
        v_lshrrev_b32 v{T[1]}, 5, v{vL}
        v_lshl_add_u32 v{T[2]}, v{T[1]}, 3, v{T[2]}
        s_lshl_b32 s24, s{sRB}, 16
        s_lshl_b32 s25, s{sAI}, 15
        s_add_u32 s24, s24, s25
        s_lshl_b32 s25, s{sCT}, 7
        s_add_u32 s24, s24, s25
        s_lshl_b32 s25, s{sKQ}, 5
        s_add_u32 s24, s24, s25
        buffer_load_dwordx2 {vr(self.vE,2)}, v{T[2]}, {sr(S_X,4)}, s24 offen
        buffer_load_dwordx2 {vr(self.vE+2,2)}, v{T[2]}, {sr(S_X,4)}, s24 offen offset:16
        s_cmp_ge_u32 s{sW}, 3
        s_cbranch_scc1 {L}
        v_mul_u32_u24 v{T[1]}, {16*6144}, v{T[1]}
        v_lshl_add_u32 v{T[1]}, v{T[0]}, 3, v{T[1]}
        s_lshl_b32 s24, s{sW}, 11
        s_lshl_b32 s25, s{sCT}, 8
        s_add_u32 s24, s24, s25
        s_add_u32 s24, s24, {WS_CP}""")
        for i in range(16):
            a(f"buffer_load_dwordx2 {vr(tmp+2*i,2)}, v{T[1]}, s[12:15], s24 offen\ns_add_u32 s24, s24, 6144")
        a("s_waitcnt vmcnt(0)")
        for i in range(1, 16):
            a(f"v_add_f32 v{tmp}, v{tmp}, v{tmp+2*i}\nv_add_f32 v{tmp+1}, v{tmp+1}, v{tmp+2*i+1}")
        half_sum(a, tmp, T[1]); half_sum(a, tmp+1, T[1])
        a(f"""s_lshl_b32 s24, s{sW}, 8
        s_add_u32 s24, s24, {T_C}
        v_lshlrev_b32 v{T[0]}, 3, v{T[0]}
        v_add_u32 v{T[0]}, s24, v{T[0]}
        ds_write_b64 v{T[0]}, {vr(tmp,2)}
        {L}:
        s_waitcnt vmcnt(0)""")
        for i in range(4):
            a(f"v_lshlrev_b32 v{self.vRes+2*i}, 16, v{self.vE+i}\nv_and_b32 v{self.vRes+2*i+1}, 0xffff0000, v{self.vE+i}")

    def attention(self):
        a = self.a; T = self.vT; vL = self.vL; vOff = self.vOff
        r = self.alloc()
        vAK = [r.get(), r.get()]; vAV = [r.get(), r.get()]; vIdx = r.get()
        vQ = r.get(4, 4)
        vK = [r.get(4, 4) for _ in range(2)]
        vV = [r.get(8, 4) for _ in range(2)]
        vSb = [r.get(16, 4) for _ in range(4)]
        vO = r.get(16, 4)
        sH, sQT, sKV = 26, 27, 28
        vm = VM(a)
        a(f"""L_layer:
        s_mov_b32 s{sH}, s{sMm}
        s_lshl_b32 s{sQT}, s{sJ}, 3
        s_add_u32 s{sQT}, s{sQT}, s{sW}
        s_lshl_b32 s{sMB}, s{sW}, 10
        s_lshl_b32 s{sKV}, s{sH}, 17
        s_add_u32 s{sKV}, s{sKV}, {WS_KV}
        s_add_u32 s{sKV}, s{sKV}, s{sLO}
        s_add_u32 s29, s{sKV}, s{sMB}
        s_lshl_b32 s24, s{sH}, 6
        s_add_u32 s24, s24, s{sQT}
        s_lshl_b32 s24, s24, 10
        s_add_u32 s24, s24, {WS_QF}
        s_add_u32 s24, s24, s{sLO}""")
        def dma(n):
            a(f"""s_add_u32 m0, s{sMB}, {n*8192}
            s_nop 0
            buffer_load_dwordx4 v{vOff}, s[12:15], s29 offen sc1 lds
            s_add_u32 s29, s29, 8192""")
            vm.add(('kv', n))
        dma(0)
        a(f"buffer_load_dwordx4 {vr(vQ,4)}, v{vOff}, s[12:15], s24 offen sc1"); vm.add('q')
        dma(1); dma(2); dma(3)
        a(f"""v_mov_b32 v{vIdx}, 0xdddd
        s_mov_b32 s30, 0xffff
        s_mov_b32 s31, 0xffff
        v_mov_b32 v{vAK[0]}, v{vOff}
        v_add_u32 v{vAK[1]}, 0x10000, v{vOff}
        v_and_b32 v{T[0]}, 15, v{vL}
        v_lshlrev_b32 v{T[0]}, 4, v{T[0]}
        v_lshrrev_b32 v{T[1]}, 5, v{vL}
        v_lshl_add_u32 v{T[1]}, v{T[1]}, 8, v{T[0]}
        v_add_u32 v{vAV[0]}, 1024, v{T[1]}
        v_add_u32 v{vAV[1]}, {0x10000+1024}, v{T[1]}
        v_and_b32 v{T[0]}, 27, v{vL}
        v_mov_b32 v{T[2]}, {ONES:#x}
        v_cmp_eq_u32 vcc, 16, v{T[0]}
        s_nop 1
        v_cndmask_b32 v{T[2]}, 0, v{T[2]}, vcc""")
        for p in range(2):
            for i in range(8): a(f"v_mov_b32 v{vV[p]+i}, v{T[2]}")
        for i in range(16): a(f"v_mov_b32 v{vO+i}, 0")
        def rdK(t):
            if t < 64: a(f"ds_read_b128 {vr(vK[t%2],4)}, v{vAK[t>>5]} offset:{(t&31)*2048}")
        def rdV(t):
            if t < 64:
                a(f"""s_mov_b64 exec, s[30:31]
                ds_read_b128 {vr(vV[t%2],4)}, v{vAV[t>>5]} offset:{(t&31)*2048}
                ds_read_b128 {vr(vV[t%2]+4,4)}, v{vAV[t>>5]} offset:{(t&31)*2048+512}
                s_mov_b64 exec, -1""")
        def qk(t):
            if t < 64: a(f"v_mfma_f32_32x32x16_bf16 {vr(vSb[t%4],16)}, {vr(vK[t%2],4)}, {vr(vQ,4)}, 0")
        def pv(t, f): a(f"v_smfmac_f32_32x32x32_bf16 {vr(vO,16)}, {vr(vV[t%2]+4*f,4)}, {vr(vSb[t%4]+8*f,8)}, v{vIdx}")
        def ex(t, i): a(f"v_exp_f32 v{vSb[t%4]+i}, v{vSb[t%4]+i}")
        need = {1: 1, 5: 2, 9: 4, 17: 8, 33: 15}
        issue = {0: [4], 1: [5], 2: [6], 3: [7], 4: [8], 6: [9], 7: [10], 8: [11], 10: [12], 11: [13], 12: [14], 13: [15]}
        prio = {0: 3, 40: 2, 56: 1, 62: 0}
        vm.wait({'q', ('kv', 0)}); a("s_barrier")
        self.mark()
        rdK(0); rdK(1)
        a("s_waitcnt lgkmcnt(1)"); qk(0)
        a("s_waitcnt lgkmcnt(0)"); qk(1)
        rdK(2); rdV(0)
        a("s_nop 7")
        for t in range(64):
            if t in prio: a(f"s_setprio {prio[t]}")
            if t in need:
                vm.wait({('kv', need[t])}); a("s_barrier")
            if t == 37:
                self.wsetup(1024)
                a(f"""s_lshl_b32 s24, s{sW}, 16
                s_lshl_b32 s25, s{sCT}, 7
                s_add_u32 s24, s24, s25
                s_lshl_b32 s25, s{sW}, 13""")
            if 38 <= t < 42:
                i = t - 38
                a(f"""s_add_u32 m0, s25, {i*2048}
                s_nop 0
                buffer_load_dwordx4 v{self.vOW0}, {sr(S_WO,4)}, s24 offen lds
                buffer_load_dwordx4 v{self.vOW1}, {sr(S_WO,4)}, s24 offen offset:1024 lds
                s_add_u32 s24, s24, {16*1024}""")
            for i in range(3): ex(t, i)
            if t > 0: pv(t-1, 1)
            rdV(t+1)
            for n in issue.get(t, []): dma(n)
            for i in range(3, 8): ex(t, i)
            a(f"s_waitcnt lgkmcnt({2 if t < 63 else 0})")
            qk(t+2)
            rdK(t+3)
            for i in range(8, 13): ex(t, i)
            pv(t, 0)
            for i in range(13, 16): ex(t, i)
        a("s_nop 1")
        pv(63, 1)
        self.mark()
        a("s_nop 15")
        vRc = vSb[0]
        a(f"""v_cmp_le_f32 vcc, {fhex(2.0**-60)}, v{vO+8}
        s_mov_b64 s[24:25], vcc
        v_cmp_ge_f32 vcc, {fhex(2.0**60)}, v{vO+8}
        s_and_b64 s[24:25], s[24:25], vcc
        v_mul_f32 v{vRc+2}, 0, v{vO}""")
        for i in range(1, 8): a(f"v_fma_f32 v{vRc+2}, 0, v{vO+i}, v{vRc+2}")
        a(f"""v_cmp_eq_f32 vcc, 0, v{vRc+2}
        s_and_b64 s[24:25], s[24:25], vcc
        s_cmp_eq_u64 s[24:25], -1
        s_cbranch_scc0 L_at_slow
        L_at_fin:
        v_rcp_f32 v{vRc}, v{vO+8}
        s_lshl_b32 s24, s{sQT}, 5
        s_add_u32 s24, s24, s{sH}""")
        for i in range(8): a(f"v_mul_f32 v{vO+i}, v{vRc}, v{vO+i}")
        for i in range(4): a(f"v_cvt_pk_bf16_f32 v{vK[0]+i}, v{vO+2*i}, v{vO+2*i+1}")
        a(f"""s_lshl_b32 s24, s24, 10
        s_add_u32 s24, s24, {WS_OF}
        s_add_u32 s24, s24, s{sLO}
        buffer_store_dwordx4 {vr(vK[0],4)}, v{vOff}, s[12:15], s24 offen sc1""")
        def slow():
            vM = vSb[1]; vC = vSb[2]; S = vSb[0]
            a(f"""L_at_slow:
            v_mov_b32 v{vM}, 0xff800000
            s_mov_b32 s29, s{sKV}
            s_mov_b32 s24, 0
            L_at_max:
            buffer_load_dwordx4 {vr(vK[0],4)}, v{vOff}, s[12:15], s29 offen sc1
            s_waitcnt vmcnt(0)
            v_mfma_f32_32x32x16_bf16 {vr(S,16)}, {vr(vK[0],4)}, {vr(vQ,4)}, 0
            s_nop 15""")
            for i in range(8): a(f"v_max3_f32 v{vM}, v{S+2*i}, v{S+2*i+1}, v{vM}")
            a(f"""s_add_u32 s29, s29, 2048
            s_add_u32 s24, s24, 1
            s_cmp_lt_u32 s24, 64
            s_cbranch_scc1 L_at_max
            v_mov_b32 v{vM+1}, v{vM}
            s_nop 1
            v_permlane32_swap_b32 v{vM}, v{vM+1}
            s_nop 1
            v_max_f32 v{vM}, v{vM}, v{vM+1}""")
            for i in range(16): a(f"v_sub_f32 v{vC+i}, 0, v{vM}\nv_mov_b32 v{vO+i}, 0")
            a(f"""s_mov_b32 s29, s{sKV}
            s_mov_b32 s24, 0
            L_at_sl2:
            buffer_load_dwordx4 {vr(vK[0],4)}, v{vOff}, s[12:15], s29 offen sc1
            s_mov_b64 exec, s[30:31]
            buffer_load_dwordx4 {vr(vV[0],4)}, v{vAV[0]}, s[12:15], s29 offen sc1
            buffer_load_dwordx4 {vr(vV[0]+4,4)}, v{vAV[0]}, s[12:15], s29 offen offset:512 sc1
            s_mov_b64 exec, -1
            s_waitcnt vmcnt(0)
            v_mfma_f32_32x32x16_bf16 {vr(S,16)}, {vr(vK[0],4)}, {vr(vQ,4)}, {vr(vC,16)}
            s_nop 15""")
            for i in range(16): a(f"v_exp_f32 v{S+i}, v{S+i}")
            a(f"""s_nop 3
            v_smfmac_f32_32x32x32_bf16 {vr(vO,16)}, {vr(vV[0],4)}, {vr(S,8)}, v{vIdx}
            v_smfmac_f32_32x32x32_bf16 {vr(vO,16)}, {vr(vV[0]+4,4)}, {vr(S+8,8)}, v{vIdx}
            s_add_u32 s29, s29, 2048
            s_add_u32 s24, s24, 1
            s_cmp_lt_u32 s24, 64
            s_nop 15
            s_cbranch_scc1 L_at_sl2
            s_branch L_at_fin""")
        self.slow = slow
        a(f"""s_lshl_b32 s27, s{sJ}, 12
        s_add_u32 s27, s27, {FL_O}
        s_add_u32 s27, s27, s{sLO}
        s_lshl_b32 s28, s{sMm}, 7
        s_add_u32 s28, s28, s27""")
        self.done(r)

    def gemm(self, NK, slot_of, npre, srdW, RS, scol, act_base, aks, sAT, worder, DA, pre_loads=None):
        a = self.a; vOff = self.vOff
        r = self.alloc()
        acc = r.get(32, 4); wf = r.get(16, 4); af = r.get(8*DA, 4)
        vm = VM(a)
        a(f"""s_lshl_b32 s24, s{sAT}, 1
        s_add_u32 s24, s24, s{sAI}
        s_mul_i32 s{sOA}, s24, {aks*1024}
        s_lshl_b32 s24, s{sKQ}, 11
        s_add_u32 s{sOA}, s{sOA}, s24
        s_add_u32 s{sOA}, s{sOA}, {act_base}
        s_add_u32 s{sOA}, s{sOA}, s{sLO}""")
        def lda(c):
            f = af + 8*(c % DA)
            a(f"""buffer_load_dwordx4 {vr(f,4)}, v{vOff}, s[12:15], s{sOA} offen sc1
            buffer_load_dwordx4 {vr(f+4,4)}, v{vOff}, s[12:15], s{sOA} offen offset:1024 sc1
            s_add_u32 s{sOA}, s{sOA}, 8192""")
            vm.add(('a', c), 2)
        def ldw(c):
            a(f"""s_add_u32 m0, s{sMB}, {slot_of(c)*16384}
            s_nop 0
            buffer_load_dwordx4 v{self.vOW0}, {sr(srdW,4)}, s{sOW} offen lds
            buffer_load_dwordx4 v{self.vOW1}, {sr(srdW,4)}, s{sOW} offen offset:1024 lds
            s_add_u32 s{sOW}, s{sOW}, {128*RS}""")
            vm.add(('w', c), 2)
        for c in range(min(DA, NK)): lda(c)
        if pre_loads: vm.add('e', pre_loads())
        a(f"""s_mul_i32 s{sOW}, s{sW}, {16*RS}
        s_lshl_b32 s24, s{scol}, 7
        s_add_u32 s{sOW}, s{sOW}, s24
        s_add_u32 s{sOW}, s{sOW}, {npre*128*RS}
        s_lshl_b32 s{sMB}, s{sW}, 11""")
        for i in range(32): a(f"v_mov_b32 v{acc+i}, 0")
        nextw = npre
        ns = NK - npre
        for c in range(NK):
            bar = False; tags = {('a', c)}
            if c == 0: bar = True
            if c >= npre and (c - npre) % 2 == 0:
                bar = True; tags |= {('w', c), ('w', c+1)}
            iss = []
            if c >= 2 and c % 2 == 0 and nextw < NK and c < npre:
                bar = True
                while nextw < NK and nextw - npre < c: iss.append(nextw); nextw += 1
            vm.wait(tags)
            if bar: a("s_barrier")
            so = slot_of(c)*16384
            hb, so = so >> 16, so & 0xffff
            for t in range(2):
                for wi in range(2):
                    f = wf + 8*t + 4*wi
                    a(f"ds_read_b64_tr_b16 {vr(f,2)}, v{self.vAW[2*hb+wi]} offset:{so+t*2048}")
                    a(f"ds_read_b64_tr_b16 {vr(f+2,2)}, v{self.vAW[2*hb+wi]} offset:{so+t*2048+1024}")
            for w_ in iss: ldw(w_)
            for t in range(2):
                for wi in range(2):
                    f = wf + 8*t + 4*wi
                    x = af + 8*(c % DA) + 4*t
                    a(f"s_waitcnt lgkmcnt({6-4*t-2*wi})")
                    A, B = (f, x) if worder == 'WA' else (x, f)
                    a(f"v_mfma_f32_32x32x16_bf16 {vr(acc+16*wi,16)}, {vr(A,4)}, {vr(B,4)}, {vr(acc+16*wi,16)}")
            if c + DA < NK: lda(c + DA)
        assert nextw == NK
        self.mark()
        return r, acc, wf

    def reduce(self, acc, red_base, fin_ai=None, fin_q=None, between=None):
        a = self.a; T = self.vT
        fa = sAI if fin_ai is None else fin_ai
        fq = sKQ if fin_q is None else fin_q
        a(f"""s_lshl_b32 s24, s{sAI}, 15
        s_lshl_b32 s25, s{sKQ}, 11
        s_add_u32 s24, s24, s25
        s_add_u32 s24, s24, {red_base}
        v_add_u32 v{T[0]}, s24, v{self.vOff}
        s_lshl_b32 s24, s{fa}, 15
        s_lshl_b32 s25, s{fq}, 13
        s_add_u32 s24, s24, s25
        s_add_u32 s24, s24, {red_base}
        v_add_u32 v{T[3]}, s24, v{self.vOff}
        s_nop 1
        s_barrier""")
        for q in range(4):
            a(f"ds_write_b128 v{T[0]}, {vr(acc+8*q,4)} offset:{q*8192}")
            a(f"ds_write_b128 v{T[0]}, {vr(acc+8*q+4,4)} offset:{q*8192+1024}")
        if between: between()
        a("s_waitcnt lgkmcnt(0)\ns_barrier")
        for q in range(4):
            a(f"ds_read_b128 {vr(acc+8*q,4)}, v{T[3]} offset:{q*2048}")
            a(f"ds_read_b128 {vr(acc+8*q+4,4)}, v{T[3]} offset:{q*2048+1024}")

    def reduce_sum(self, acc, add):
        a = self.a
        a("s_waitcnt lgkmcnt(4)")
        for i in range(8): a(f"v_add_f32 v{acc+i}, v{acc+i}, v{acc+8+i}")
        a("s_waitcnt lgkmcnt(0)")
        for i in range(8): a(f"v_add_f32 v{acc+16+i}, v{acc+16+i}, v{acc+24+i}")
        for i in range(8): a(f"v_add_f32 v{acc+i}, v{acc+i}, v{add+i}")
        for i in range(8): a(f"v_add_f32 v{acc+i}, v{acc+i}, v{acc+16+i}")

    def row_partials(self, pk, vSx):
        a = self.a; T = self.vT
        a(f"v_mov_b32 v{T[2]}, {ONES:#x}\nv_mov_b32 v{vSx}, 0\nv_mov_b32 v{vSx+1}, 0")
        for i in range(4):
            a(f"v_dot2_f32_bf16 v{vSx}, v{pk+i}, v{T[2]}, v{vSx}")
            a(f"v_dot2_f32_bf16 v{vSx+1}, v{pk+i}, v{pk+i}, v{vSx+1}")
        a("s_nop 2")
        half_sum(a, vSx, T[0]); half_sum(a, vSx+1, T[0])

    def sum4(self, pl, d):
        self.a(f"""v_add_f32 v{pl}, v{pl}, v{pl+2}
        v_add_f32 v{pl+1}, v{pl+1}, v{pl+3}
        v_add_f32 v{pl+4}, v{pl+4}, v{pl+6}
        v_add_f32 v{pl+5}, v{pl+5}, v{pl+7}
        v_add_f32 v{d}, v{pl}, v{pl+4}
        v_add_f32 v{d+1}, v{pl+1}, v{pl+5}""")

    def phase_wo(self):
        a = self.a; T = self.vT; vL = self.vL; vOff = self.vOff
        Lskip = a.label("now1")
        def pf():
            a(f"s_cmp_ge_u32 s{sCT}, 7\ns_cbranch_scc1 {Lskip}")
            self.prefetch_chunks(S_W1, 3584, sFT, 0, [4, 5, 6, 7, 8], 3, 16)
            a(f"{Lskip}:")
        self.signal_wait(28, 27, 32, pf)
        r, acc, wf = self.gemm(4, lambda c: c, 4, S_WO, 1024, sCT, WS_OF, 32, sRB, 'WA', 4)
        self.reduce(acc, 0)
        self.reduce_sum(acc, self.vRes)
        self.mark()
        vSx = wf + 8
        for i in range(8): a(f"v_mov_b32 v{self.vRes+i}, v{acc+i}")
        for i in range(4): a(f"v_cvt_pk_bf16_f32 v{wf+i}, v{acc+2*i}, v{acc+2*i+1}")
        a(f"""s_lshl_b32 s26, s{sRB}, 1
        s_add_u32 s26, s26, s{sAI}
        s_lshl_b32 s27, s{sCT}, 2
        s_add_u32 s27, s27, s{sKQ}
        s_lshl_b32 s28, s26, 13
        s_add_u32 s28, s28, {WS_EX}
        s_add_u32 s28, s28, s{sLO}
        s_lshl_b32 s25, s27, 8
        s_add_u32 s25, s25, s28""")
        self.row_partials(wf, vSx)
        pl = acc + 16
        L = a.label("ex")
        a(f"""v_mov_b32 v{T[1]}, 0x7fc00000
        v_cmp_eq_u32 vcc, -1, v{vSx}
        v_and_b32 v{T[0]}, 31, v{vL}
        v_lshlrev_b32 v{T[0]}, 3, v{T[0]}
        v_cndmask_b32 v{vSx}, v{vSx}, v{T[1]}, vcc
        v_cmp_eq_u32 vcc, -1, v{vSx+1}
        s_mov_b32 exec_hi, 0
        s_nop 0
        v_cndmask_b32 v{vSx+1}, v{vSx+1}, v{T[1]}, vcc
        s_nop 0
        buffer_store_dwordx2 {vr(vSx,2)}, v{T[0]}, s[12:15], s25 offen sc1
        s_mov_b64 exec, -1
        v_lshrrev_b32 v{T[1]}, 5, v{vL}
        v_lshl_add_u32 v{T[2]}, v{T[1]}, 10, v{T[0]}
        s_lshl_b32 s25, s{sKQ}, 11
        s_add_u32 s25, s25, s28
        s_mov_b32 s24, 0
        s_waitcnt vmcnt(0)
        {L}_poll:""")
        for k in range(4):
            a(f"buffer_load_dwordx2 {vr(pl+2*k,2)}, v{T[2]}, s[12:15], s25 offen offset:{k*256} sc1")
        a(f"""s_add_u32 s24, s24, 1
        s_waitcnt vmcnt(0)
        v_max3_u32 v{T[1]}, v{pl}, v{pl+1}, v{pl+2}
        v_max3_u32 v{T[1]}, v{pl+3}, v{pl+4}, v{T[1]}
        v_max3_u32 v{T[1]}, v{pl+5}, v{pl+6}, v{T[1]}
        v_max_u32 v{T[1]}, v{pl+7}, v{T[1]}
        v_cmp_eq_u32 vcc, -1, v{T[1]}
        s_cmp_ge_u32 s24, {SPIN}
        s_cbranch_scc1 {L}_got
        s_cbranch_vccnz {L}_poll
        {L}_got:""")
        self.mark()
        self.sum4(pl, vSx)
        half_sum(a, vSx, T[1]); half_sum(a, vSx+1, T[1])
        a(f"""s_lshl_b32 s24, s{sAI}, 10
        s_add_u32 s24, s24, {T_ST}
        v_add_u32 v{T[0]}, s24, v{T[0]}
        s_lshl_b32 s24, s{sKQ}, 8
        v_add_u32 v{T[1]}, s24, v{T[0]}
        ds_write_b64 v{T[1]}, {vr(vSx,2)}
        s_waitcnt lgkmcnt(0)
        s_barrier""")
        for k in range(4): a(f"ds_read_b64 {vr(pl+2*k,2)}, v{T[0]} offset:{k*256}")
        a("s_waitcnt lgkmcnt(0)")
        self.sum4(pl, vSx)
        vSy = vSx+1
        a(f"""v_mul_f32 v{vSx}, {fhex(1/512)}, v{vSx}
        v_mul_f32 v{vSy}, {fhex(1/512)}, v{vSy}
        v_fma_f32 v{vSy}, -v{vSx}, v{vSx}, v{vSy}
        v_max_f32 v{vSy}, 0, v{vSy}
        v_add_f32 v{pl}, {fhex(EPS)}, v{vSy}
        v_rsq_f32 v{pl}, v{pl}
        s_nop 0
        v_mul_f32 v{pl+1}, v{pl}, v{pl}
        v_mul_f32 v{pl+1}, v{pl+1}, v{vSy}
        v_add_f32 v{pl+1}, {fhex(EPS)}, v{pl+1}
        v_rsq_f32 v{pl+1}, v{pl+1}
        s_nop 0
        v_mul_f32 v{pl}, v{pl}, v{pl+1}""")
        for i in range(8): a(f"v_sub_f32 v{acc+i}, v{acc+i}, v{vSx}")
        for i in range(8): a(f"v_mul_f32 v{acc+i}, v{acc+i}, v{pl}")
        for i in range(4): a(f"v_cvt_pk_bf16_f32 v{wf+4+i}, v{acc+2*i}, v{acc+2*i+1}")
        a(f"""s_lshr_b32 s24, s27, 1
        s_lshl_b32 s24, s24, 7
        v_mfma_f32_32x32x16_bf16 {vr(acc+16,16)}, {vr(wf+4,4)}, {vr(self.vId,4)}, 0
        s_lshl_b32 s25, s26, 1
        s_add_u32 s24, s24, s25
        s_lshl_b32 s24, s24, 10
        s_add_u32 s24, s24, {WS_HF}
        s_add_u32 s24, s24, s{sLO}
        s_and_b32 s28, s{sKQ}, 1
        s_lshl_b32 s28, s28, 4
        s_lshl_b32 s28, 0xffff, s28
        s_mov_b32 s29, s28
        s_nop 7""")
        for i in range(8): a(f"v_cvt_pk_bf16_f32 v{acc+i}, v{acc+16+2*i}, v{acc+16+2*i+1}")
        a(f"""s_mov_b64 exec, s[28:29]
        buffer_store_dwordx4 {vr(acc,4)}, v{vOff}, s[12:15], s24 offen sc1
        buffer_store_dwordx4 {vr(acc+4,4)}, v{vOff}, s[12:15], s24 offen offset:1024 sc1
        s_mov_b64 exec, -1""")
        a(f"""s_lshl_b32 s28, s{sCT}, 5
        s_add_u32 s28, s28, s{sRB}
        s_lshl_b32 s28, s28, 7
        s_add_u32 s28, s28, {FL_H}
        s_add_u32 s28, s28, s{sLO}
        s_lshl_b32 s27, s{sDT}, 12
        s_add_u32 s27, s27, {FL_H}
        s_add_u32 s27, s27, s{sLO}""")
        self.done(r)

    def phase_w1(self):
        a = self.a; T = self.vT; vL = self.vL; vOff = self.vOff
        a(f"s_cmp_ge_u32 s{sCT}, 7\ns_cbranch_scc1 L_w1_idle")
        self.signal_wait(28, 27, 32, lambda: self.prefetch_chunks(S_W1, 3584, sFT, 5, [0, 1, 2, 3], 4, 16))
        def pre():
            a(f"""v_lshrrev_b32 v{T[0]}, 5, v{vL}
            v_lshlrev_b32 v{T[0]}, 3, v{T[0]}
            s_lshl_b32 s24, s{sFT}, 7
            s_lshl_b32 s25, s{sKQ}, 5
            s_add_u32 s24, s24, s25
            buffer_load_dwordx2 {vr(self.vE,2)}, v{T[0]}, {sr(S_B1,4)}, s24 offen
            buffer_load_dwordx2 {vr(self.vE+2,2)}, v{T[0]}, {sr(S_B1,4)}, s24 offen offset:16""")
            return 2
        r, acc, wf = self.gemm(16, lambda c: (c + 4) % 9, 9, S_W1, 3584, sFT, WS_HF, 128, sDT, 'WA', 4, pre)
        self.reduce(acc, 0, between=lambda: self.prefetch_chunks(S_W2, 4096, sRB, 0, [4, 5, 6, 7, 8], 3, 14))
        for i in range(4):
            a(f"v_lshlrev_b32 v{wf+2*i}, 16, v{self.vE+i}\nv_and_b32 v{wf+2*i+1}, 0xffff0000, v{self.vE+i}")
        self.reduce_sum(acc, wf)
        self.mark()
        ga = -2*math.sqrt(2/math.pi)*math.log2(math.e); gb = ga*0.044715
        a(f"v_mov_b32 v{T[0]}, {fhex(ga)}\ns_mov_b32 s28, {fhex(gb)}")
        for i in range(8): a(f"v_mul_f32 v{acc+8+i}, v{acc+i}, v{acc+i}")
        for i in range(8): a(f"v_fma_f32 v{acc+8+i}, v{acc+8+i}, s28, v{T[0]}")
        for i in range(8): a(f"v_mul_f32 v{acc+8+i}, v{acc+8+i}, v{acc+i}")
        for i in range(8): a(f"v_exp_f32 v{acc+8+i}, v{acc+8+i}")
        for i in range(8): a(f"v_add_f32 v{acc+8+i}, 1.0, v{acc+8+i}")
        for i in range(8): a(f"v_rcp_f32 v{acc+8+i}, v{acc+8+i}")
        for i in range(8): a(f"v_mul_f32 v{acc+i}, v{acc+8+i}, v{acc+i}")
        for i in range(4): a(f"v_cvt_pk_bf16_f32 v{wf+i}, v{acc+2*i}, v{acc+2*i+1}")
        a(f"""s_lshl_b32 s24, s{sDT}, 1
        s_add_u32 s24, s24, s{sAI}
        s_mul_i32 s24, s24, 112
        s_lshl_b32 s25, s{sFT}, 2
        s_add_u32 s24, s24, s25
        s_add_u32 s24, s24, s{sKQ}
        s_lshl_b32 s24, s24, 10
        s_add_u32 s24, s24, {WS_UF}
        s_add_u32 s24, s24, s{sLO}
        buffer_store_dwordx4 {vr(wf,4)}, v{vOff}, s[12:15], s24 offen sc1
        s_lshl_b32 s28, s{sDT}, 5
        s_add_u32 s28, s28, s{sFT}
        s_lshl_b32 s28, s28, 7
        s_add_u32 s28, s28, {FL_U}
        s_add_u32 s28, s28, s{sLO}
        s_branch L_w1_done""")
        a("L_w1_idle:")
        a(f"""s_waitcnt vmcnt(0)
        s_barrier
        s_cmp_lg_u32 s{sW}, 0
        s_cbranch_scc1 L_w1_idle_ns
        v_mov_b32 v{T[0]}, 1
        v_mov_b32 v{T[1]}, 0
        s_mov_b64 exec, 1
        buffer_store_dword v{T[0]}, v{T[1]}, s[12:15], s28 offen sc1
        s_mov_b64 exec, -1
        L_w1_idle_ns:
        s_lshl_b32 s28, s{sJ}, 5
        s_add_u32 s28, s28, s{sMm}
        s_lshl_b32 s28, s28, 7
        s_add_u32 s28, s28, {FL_U}
        s_add_u32 s28, s28, s{sLO}""")
        if STAMP:
            a(f"s_add_u32 s{sST}, s{sST}, 4")
        self.prefetch_chunks(S_W2, 4096, sRB, 0, [4, 5, 6, 7, 8], 3, 14)
        a("L_w1_done:")
        a(f"""s_lshl_b32 s27, s{sCT}, 12
        s_add_u32 s27, s27, {FL_U}
        s_add_u32 s27, s27, s{sLO}""")
        self.done(r)

    def qkv_prefetch(self):
        a = self.a
        a(f"""v_mul_u32_u24 v{self.vOW0}, 3072, v{self.vRow}
        v_add_u32 v{self.vOW0}, v{self.vOW0}, v{self.vSw}
        s_mul_i32 s{sOW}, s{sW}, {8*3072}
        s_lshl_b32 s24, s{sCT}, 7
        s_add_u32 s{sOW}, s{sOW}, s24
        s_mul_i32 s{sMB}, s{sW}, 3072""")
        for c in range(3): self.qkv_dma(c)

    def qkv_dma(self, c):
        self.a(f"""s_add_u32 m0, s{sMB}, {65536 + (c % 3)*24576}
        s_nop 0
        buffer_load_dwordx4 v{self.vOW0}, {sr(S_WQ,4)}, s{sOW} offen lds
        buffer_load_dwordx4 v{self.vOW0}, {sr(S_WQ,4)}, s{sOW} offen offset:1024 lds
        buffer_load_dwordx4 v{self.vOW0}, {sr(S_WQ,4)}, s{sOW} offen offset:2048 lds
        s_add_u32 s{sOW}, s{sOW}, {64*3072}""")

    def phase_w2(self):
        a = self.a; T = self.vT; vL = self.vL; vOff = self.vOff
        self.signal_wait(28, 27, 28, lambda: self.prefetch_chunks(S_W2, 4096, sRB, 5, [0, 1, 2, 3], 4, 14))
        def pre():
            a(f"""v_and_b32 v{T[0]}, 31, v{vL}
            v_lshlrev_b32 v{T[0]}, 1, v{T[0]}
            s_lshl_b32 s24, s{sRB}, 7
            s_lshl_b32 s25, s{sAI}, 6
            s_add_u32 s24, s24, s25
            buffer_load_ushort v{self.vE}, v{T[0]}, {sr(S_B2,4)}, s24 offen""")
            return 1
        r, acc, wf = self.gemm(14, lambda c: (c + 4) % 9, 9, S_W2, 4096, sRB, WS_UF, 112, sCT, 'AW', 4, pre)
        a(f"""s_lshr_b32 s30, s{sKQ}, 1
        s_and_b32 s31, s{sKQ}, 1
        s_lshl_b32 s24, s{sAI}, 1
        s_add_u32 s31, s31, s24""")
        Lq = a.label("noq")
        def between():
            a(f"s_cmp_lg_u32 s{sLO}, 0\ns_cbranch_scc1 {Lq}")
            self.qkv_prefetch()
            a(f"{Lq}:")
        self.reduce(acc, 0, 30, 31, between)
        a(f"v_lshlrev_b32 v{self.vE}, 16, v{self.vE}")
        for i in range(8): a(f"v_add_f32 v{wf+i}, v{self.vE}, v{self.vRes+i}")
        self.reduce_sum(acc, wf)
        self.mark()
        for i in range(4): a(f"v_cvt_pk_bf16_f32 v{wf+i}, v{acc+2*i}, v{acc+2*i+1}")
        a(f"""s_lshl_b32 s26, s{sRB}, 1
        s_add_u32 s26, s26, s{sAI}
        s_lshl_b32 s27, s{sCT}, 2
        s_add_u32 s27, s27, s{sKQ}
        s_cmp_lg_u32 s{sLO}, 0
        s_cbranch_scc1 L_final
        s_lshl_b32 s24, s26, 5
        s_add_u32 s24, s24, s27
        s_lshl_b32 s25, s24, 8
        s_add_u32 s25, s25, {WS_S2}
        s_lshl_b32 s24, s24, 10
        s_add_u32 s24, s24, {WS_XF}
        buffer_store_dwordx4 {vr(wf,4)}, v{vOff}, s[12:15], s24 offen sc1""")
        for i in range(8): a(f"v_mov_b32 v{self.vRes+i}, v{acc+i}")
        vSx = wf + 8
        self.row_partials(wf, vSx)
        a(f"""v_and_b32 v{T[0]}, 31, v{vL}
        v_lshlrev_b32 v{T[0]}, 3, v{T[0]}
        s_mov_b32 exec_hi, 0
        buffer_store_dwordx2 {vr(vSx,2)}, v{T[0]}, s[12:15], s25 offen sc1
        s_mov_b64 exec, -1
        s_lshl_b32 s27, s{sRB}, 10
        s_add_u32 s27, s27, {FL_X}
        s_lshl_b32 s28, s{sCT}, 7
        s_add_u32 s28, s28, s27""")
        def final():
            a(f"""L_final:
            v_and_b32 v{T[0]}, 31, v{vL}
            v_lshlrev_b32 v{T[0]}, 10, v{T[0]}
            v_lshrrev_b32 v{T[1]}, 5, v{vL}
            v_lshl_add_u32 v{T[0]}, v{T[1]}, 4, v{T[0]}
            v_permlane32_swap_b32 v{wf}, v{wf+2}
            v_permlane32_swap_b32 v{wf+1}, v{wf+3}
            s_lshl_b32 s24, s26, 15
            s_lshl_b32 s25, s27, 5
            s_add_u32 s24, s24, s25
            buffer_store_dwordx4 {vr(wf,4)}, v{T[0]}, {sr(S_OUT,4)}, s24 offen""")
            if STAMP:
                a(f"""s_waitcnt vmcnt(0)
                s_memrealtime s[44:45]
                s_memtime s[46:47]
                s_waitcnt lgkmcnt(0)
                s_sub_u32 s46, s46, s42
                v_writelane_b32 v{self.vStamp}, s40, 0
                v_writelane_b32 v{self.vStamp}, s44, 1
                v_writelane_b32 v{self.vStamp}, s46, 2
                s_lshl_b32 s24, s2, 3
                s_add_u32 s24, s24, s{sW}
                s_lshl_b32 s24, s24, 8
                s_add_u32 s24, s24, {WS_ST}
                v_lshlrev_b32 v{T[0]}, 2, v{vL}
                buffer_store_dword v{self.vStamp}, v{T[0]}, s[12:15], s24 offen""")
            a("L_kb_end:\ns_endpgm")
        self.final = final
        self.done(r)

    def phase_qkv(self):
        a = self.a; T = self.vT; vL = self.vL; vOff = self.vOff
        self.signal_wait(28, 27, 8, None)
        r = self.alloc()
        acc0 = r.get(16, 4); acc1 = r.get(16, 4); fr = r.get(48, 4); pl = r.get(8, 2); vSx = r.get(2)
        vAX = r.get(); vAQ = [r.get(), r.get()]; vO1 = r.get()
        sSI, sCH = sAI, 30
        vm = VM(a)
        a(f"""s_lshl_b32 s24, s{sRB}, 1
        s_add_u32 s24, s24, s{sAI}
        s_lshl_b32 s25, s24, 13
        s_lshl_b32 s24, s24, 15
        s_lshl_b32 s26, s{sKQ}, 10
        s_add_u32 s24, s24, s26
        s_add_u32 s24, s24, {WS_XF}
        s_lshl_b32 s27, s{sAI}, 12
        s_add_u32 s26, s26, s27""")
        for c in range(8):
            a(f"""s_add_u32 m0, s26, {c*8192}
            s_nop 0
            buffer_load_dwordx4 v{vOff}, s[12:15], s24 offen sc1 lds
            s_add_u32 s24, s24, 4096""")
            vm.add(('x', c))
        a(f"""v_and_b32 v{T[0]}, 31, v{vL}
        v_lshlrev_b32 v{T[0]}, 3, v{T[0]}
        v_lshrrev_b32 v{T[1]}, 5, v{vL}
        v_lshl_add_u32 v{T[2]}, v{T[1]}, 10, v{T[0]}
        s_lshl_b32 s24, s{sKQ}, 11
        s_add_u32 s25, s25, s24
        s_add_u32 s25, s25, {WS_S2}""")
        for k in range(4):
            a(f"buffer_load_dwordx2 {vr(pl+2*k,2)}, v{T[2]}, s[12:15], s25 offen offset:{k*256} sc1")
        vm.add('st', 4)
        a(f"""s_bfe_u32 s{sCH}, s{sW}, 0x10001
        s_lshl_b32 s24, s{sCH}, 6
        v_xor_b32 v{vAQ[0]}, s24, v{self.vTr}
        v_add_u32 v{vAQ[0]}, 65536, v{vAQ[0]}
        v_add_u32 v{vAQ[1]}, 49152, v{vAQ[0]}
        v_add_u32 v{vAX}, s27, v{vOff}""")
        for i in range(16): a(f"v_mov_b32 v{acc0+i}, 0\nv_mov_b32 v{acc1+i}, 0")
        a(f"s_cmp_ge_u32 s{sW}, 4\ns_cbranch_scc1 L_q2_vwave")
        ops0 = list(vm.ops)
        def head(c):
            vm.wait({('x', c), ('w', c)}); a("s_barrier")
            if 1 <= c and c+2 < 8:
                self.qkv_dma(c+2); vm.add(('w', c+2), 3)
            if c == 4:
                self.sum4(pl, vSx)
                half_sum(a, vSx, T[1]); half_sum(a, vSx+1, T[1])
                a(f"""s_lshl_b32 s24, s{sAI}, 10
                s_add_u32 s24, s24, {T_ST}
                v_add_u32 v{T[0]}, s24, v{T[0]}
                s_lshl_b32 s24, s{sKQ}, 8
                v_add_u32 v{T[1]}, s24, v{T[0]}
                ds_write_b64 v{T[1]}, {vr(vSx,2)}
                s_waitcnt lgkmcnt(0)""")
            if c == 6:
                for k in range(4): a(f"ds_read_b64 {vr(pl+2*k,2)}, v{T[0]} offset:{k*256}")
                a("s_waitcnt lgkmcnt(0)")
                self.sum4(pl, vSx)
                a(f"""v_mul_f32 v{vSx}, {fhex(1/512)}, v{vSx}
                v_mul_f32 v{vSx+1}, {fhex(1/512)}, v{vSx+1}
                v_fma_f32 v{vSx+1}, -v{vSx}, v{vSx}, v{vSx+1}
                v_max_f32 v{vSx+1}, 0, v{vSx+1}
                v_add_f32 v{vSx+1}, {fhex(EPS)}, v{vSx+1}
                v_rsq_f32 v{vSx+1}, v{vSx+1}
                v_and_b32 v{T[1]}, 31, v{vL}
                v_lshlrev_b32 v{T[1]}, 2, v{T[1]}
                s_lshl_b32 s24, s{sAI}, 7
                s_add_u32 s24, s24, {T_MU}
                v_add_u32 v{T[1]}, s24, v{T[1]}
                ds_write_b32 v{T[1]}, v{vSx}
                ds_write_b32 v{T[1]}, v{vSx+1} offset:256
                s_waitcnt lgkmcnt(0)""")
        def woff(c):
            s = c % 3
            return s >> 1, (s & 1)*24576
        for c in range(8):
            head(c)
            hb, so = woff(c)
            def rd(t):
                f = fr + 12*t
                a(f"ds_read_b128 {vr(f,4)}, v{vAX} offset:{c*8192+t*1024}")
                for g in range(2):
                    a(f"ds_read_b64_tr_b16 {vr(f+4+4*g,2)}, v{vAQ[hb]} offset:{so+t*6144+g*1024}")
                    a(f"ds_read_b64_tr_b16 {vr(f+6+4*g,2)}, v{vAQ[hb]} offset:{so+t*6144+g*1024+3072}")
            def cp(t):
                f = fr + 12*t
                a(f"v_mfma_f32_32x32x16_bf16 {vr(acc0,16)}, {vr(f+4,4)}, {vr(f,4)}, {vr(acc0,16)}")
                a(f"v_mfma_f32_32x32x16_bf16 {vr(acc1,16)}, {vr(f+8,4)}, {vr(f,4)}, {vr(acc1,16)}")
            rd(0); rd(1); rd(2)
            a("s_waitcnt lgkmcnt(10)"); cp(0); rd(3)
            a("s_waitcnt lgkmcnt(10)"); cp(1)
            a("s_waitcnt lgkmcnt(5)"); cp(2)
            a("s_waitcnt lgkmcnt(0)"); cp(3)
        self.mark()
        a(f"""v_lshrrev_b32 v{T[2]}, 5, v{vL}
        v_lshlrev_b32 v{T[2]}, 4, v{T[2]}
        s_lshl_b32 s24, s{sCH}, 7
        s_add_u32 s24, s24, {T_C}
        v_add_u32 v{T[2]}, s24, v{T[2]}""")
        for g in range(2):
            for q in range(4):
                a(f"ds_read_b128 {vr(fr+16*g+4*q,4)}, v{T[2]} offset:{g*256+q*32}")
        qkv_store_setup(a, sCT, sCH, sRB, sSI, LSTR)
        k_lane_off(a, vO1, vL, T[1])
        a(f"v_mul_f32 v{pl}, {fhex(QSCALE)}, v{vSx+1}\ns_waitcnt lgkmcnt(0)")
        for g, (acc, rr) in enumerate(((acc0, pl), (acc1, vSx+1))):
            for i in range(16):
                a(f"v_fma_f32 v{acc+i}, -v{vSx}, v{fr+16*g+i}, v{acc+i}")
            for i in range(16):
                a(f"v_mul_f32 v{acc+i}, v{rr}, v{acc+i}")
            for i in range(8):
                a(f"v_cvt_pk_bf16_f32 v{fr+16*g+i}, v{acc+2*i}, v{acc+2*i+1}")
            vo = vOff if g == 0 else vO1
            a(f"buffer_store_dwordx4 {vr(fr+16*g,4)}, v{vo}, s[12:15], s{26+2*g} offen sc1")
            a(f"buffer_store_dwordx4 {vr(fr+16*g+4,4)}, v{vo}, s[12:15], s{27+2*g} offen sc1")
        a("s_branch L_q2_done")
        a("L_q2_vwave:")
        vm.ops = list(ops0)
        for c in range(8):
            head(c)
            hb, so = woff(c)
            for t in range(4):
                f = fr + 8*t
                a(f"ds_read_b128 {vr(f,4)}, v{vAX} offset:{c*8192+t*1024}")
                a(f"ds_read_b64_tr_b16 {vr(f+4,2)}, v{vAQ[hb]} offset:{so+t*6144+2048}")
                a(f"ds_read_b64_tr_b16 {vr(f+6,2)}, v{vAQ[hb]} offset:{so+t*6144+2048+3072}")
            for t in range(4):
                f = fr + 8*t
                a(f"s_waitcnt lgkmcnt({9-3*t})")
                a(f"v_mfma_f32_32x32x16_bf16 {vr(acc0,16)}, {vr(f,4)}, {vr(f+4,4)}, {vr(acc0,16)}")
        self.mark()
        a(f"""v_lshrrev_b32 v{T[2]}, 5, v{vL}
        v_lshlrev_b32 v{T[2]}, 4, v{T[2]}
        s_lshl_b32 s24, s{sAI}, 7
        s_add_u32 s24, s24, {T_MU}
        v_add_u32 v{T[2]}, s24, v{T[2]}
        v_and_b32 v{T[1]}, 31, v{vL}
        v_lshlrev_b32 v{T[1]}, 2, v{T[1]}
        s_lshl_b32 s24, s{sCH}, 7
        s_add_u32 s24, s24, {T_C + 512}
        v_add_u32 v{T[1]}, s24, v{T[1]}
        ds_read_b32 v{pl}, v{T[1]}""")
        for q in range(4):
            a(f"ds_read_b128 {vr(fr+4*q,4)}, v{T[2]} offset:{q*32}")
            a(f"ds_read_b128 {vr(fr+16+4*q,4)}, v{T[2]} offset:{256+q*32}")
        qkv_store_setup(a, sCT, sCH, sRB, sSI, LSTR)
        v_lane_off(a, vO1, vL, T[1])
        a("s_waitcnt lgkmcnt(0)")
        for i in range(16):
            a(f"v_fma_f32 v{acc0+i}, -v{fr+i}, v{pl}, v{acc0+i}")
        for i in range(16):
            a(f"v_mul_f32 v{acc0+i}, v{fr+16+i}, v{acc0+i}")
        for i in range(8):
            a(f"v_cvt_pk_bf16_f32 v{fr+32+i}, v{acc0+2*i}, v{acc0+2*i+1}")
        a(f"buffer_store_dwordx4 {vr(fr+32,4)}, v{vO1}, s[12:15], s28 offen offset:1024 sc1")
        a(f"buffer_store_dwordx4 {vr(fr+36,4)}, v{vO1}, s[12:15], s28 offen offset:1536 sc1")
        a("L_q2_done:")
        a(f"""s_lshl_b32 s27, s{sCT}, 12
        s_add_u32 s27, s27, {FL_Q}
        s_lshl_b32 s28, s{sRB}, 7
        s_add_u32 s28, s28, s27""")
        self.signal_wait(28, 27, 32, None)
        a(f"s_mov_b32 s{sLO}, {LSTR}\ns_branch L_layer")
        self.done(r)

def gen_kb(a):
    k = KB(a)
    k.prologue()
    k.setup_consts()
    r = k.alloc(); k.first_layer_extras(r); k.done(r)
    k.attention()
    k.phase_wo()
    k.phase_w1()
    k.phase_w2()
    k.phase_qkv()
    k.slow()
    k.final()
    kernels.append(("main_kernel", k.R.hi))
    return 163840

def main(out):
    a = Asm()
    la = gen_ka(a); lb = gen_kb(a)
    hdr = open(f"cdna_kernels/{NAME}.s.ref").read().split("; Override launch")[0]
    for k, g, l in [("qkv1", 256, la), ("main", 256, lb)]:
        hdr += f"; @launch kernel={k}_kernel grid=({g},1,1) block=(512,1,1) lds={l}\n"
    txt = hdr + '.amdgcn_target "amdgcn-amd-amdhsa--gfx950"\n.text\n' + a.text()
    txt += '.section .rodata,"a"\n'
    for k, nv in kernels:
        acc = (nv + 3)//4*4
        txt += f""".p2align 6
.amdhsa_kernel {k}
  .amdhsa_next_free_vgpr {acc}
  .amdhsa_next_free_sgpr 80
  .amdhsa_accum_offset {acc}
  .amdhsa_group_segment_fixed_size 0
  .amdhsa_kernarg_size 88
  .amdhsa_user_sgpr_count 2
  .amdhsa_user_sgpr_kernarg_segment_ptr 1
  .amdhsa_system_sgpr_workgroup_id_x 1
  .amdhsa_float_denorm_mode_32 3
.end_amdhsa_kernel
"""
    open(out, "w").write(txt)
    print(kernels, len(txt))

if __name__ == "__main__":
    if len(sys.argv) > 2 and sys.argv[2] == "stamp": STAMP = True
    main(sys.argv[1] if len(sys.argv) > 1 else f"cdna_kernels/{NAME}.s")
```

```python
import math, sys
from asmlib import *

NAME = "interleave_layers__softmax_full_mha__mixer_token_mlp__prompt"
KA_X, KA_WQKV, KA_WO, KA_W1, KA_B1, KA_W2, KA_B2, KA_OUT, KA_DBG, KA_WS = 0, 8, 16, 32, 40, 48, 56, 64, 72, 80
WS_QF = 0x000000
WS_KV = 0x200000
WS_OF = 0x600000
WS_XF = 0x800000
WS_HF = 0xA00000
WS_UF = 0xC00000
WS_EX = 0xDC0000
WS_FL = 0xE00000
WS_S2 = 0xF00000
WS_CP = 0xF40000
WS_ST = 0xF80000
LSTR = 0x1000000
WS_SIZE = 0x2000000
FL_O, FL_H, FL_Q, FL_P, FL_U, FL_X = [WS_FL + i*128 for i in (0, 1024, 2048, 3072, 4096, 6144)]
EPS = 1e-5
QSCALE = 0.25 * math.log2(math.e)
ONES = 0x3F803F80
STAMP = False
SPIN = 0x10000

kernels = []

def kstart(a, name):
    a(f".globl {name}\n.p2align 8\n.type {name},@function\n{name}:")

def srd(a, s, size):
    a(f"s_mov_b32 s{s+2}, {size:#x}\ns_mov_b32 s{s+3}, 0x20000")

def half_sum(a, x, t):
    a(f"v_mov_b32 v{t}, v{x}\ns_nop 1\nv_permlane32_swap_b32 v{x}, v{t}\ns_nop 1\nv_add_f32 v{x}, v{x}, v{t}")

class VM:
    def __init__(self, a): self.a = a; self.ops = []
    def add(self, tag, n=1): self.ops += [tag]*n
    def wait(self, tags):
        last = max((i for i, t in enumerate(self.ops) if t in tags), default=-1)
        n = len(self.ops) - 1 - last
        assert n < 64
        self.a(f"s_waitcnt vmcnt({n})")

def qkv_store_setup(a, sCG, sCH, sRB, sSI, sLO):
    a(f"""s_lshl_b32 s24, s{sCG}, 2
    s_lshl_b32 s25, s{sCH}, 1
    s_add_u32 s24, s24, s25
    s_lshl_b32 s24, s24, 6
    s_lshl_b32 s25, s{sRB}, 1
    s_add_u32 s25, s25, s{sSI}
    s_add_u32 s24, s24, s25
    s_lshl_b32 s26, s24, 10
    s_add_u32 s26, s26, {WS_QF + sLO}
    s_add_u32 s27, s26, {64*1024}
    s_lshl_b32 s28, s24, 11
    s_add_u32 s28, s28, {WS_KV + sLO}
    s_add_u32 s29, s28, {64*2048}""")

def k_lane_off(a, d, vL, t):
    a(f"""v_and_b32 v{d}, 0x33, v{vL}
    v_bfe_u32 v{t}, v{vL}, 2, 1
    v_lshl_add_u32 v{d}, v{t}, 3, v{d}
    v_bfe_u32 v{t}, v{vL}, 3, 1
    v_lshl_add_u32 v{d}, v{t}, 2, v{d}
    v_lshlrev_b32 v{d}, 4, v{d}""")

def v_lane_off(a, d, vL, t):
    a(f"""v_and_b32 v{d}, 15, v{vL}
    v_lshlrev_b32 v{d}, 4, v{d}
    v_lshrrev_b32 v{t}, 5, v{vL}
    v_lshl_add_u32 v{d}, v{t}, 8, v{d}
    v_bfe_u32 v{t}, v{vL}, 4, 1
    v_lshl_add_u32 v{d}, v{t}, 17, v{d}""")

S_WQ, S_WO, S_WS, S_W1, S_W2, S_B1, S_B2, S_X, S_OUT = 4, 8, 12, 48, 52, 56, 60, 64, 68
sW, sJ, sMm, sLO, sRB, sCT, sSI, sRH = 16, 17, 18, 19, 20, 21, 22, 23
sOA, sOW, sMB, sLOC, sDT, sFT, sST, sOX = 32, 33, 34, 35, 36, 37, 38, 39
sFa, sFb, sSa, sSb, sPa, sPb = 72, 73, 74, 75, 76, 77
S_DBG = 80
XBS = 1040
WR = 66560
MARKS = []
TAB = 159744
T_C, T_MU = TAB, TAB+1024
RED = 131072
KVR = 98304
CONST = 131072
W2R = 160
DA = 10

class KB:
    def __init__(self, a):
        self.a = a
        R = self.R = Regs(1)
        self.vL, self.vOff, self.vRow, self.vSw, self.vTr, self.vStamp = [R.get() for _ in range(6)]
        self.vT = [R.get() for _ in range(4)]
        self.vOW = [R.get() for _ in range(4)]
        self.vRedW = [R.get() for _ in range(3)]
        self.vRedR, self.vOffA, self.vPoll = R.get(), R.get(), R.get()
        self.vTW = [R.get(), R.get()]
        self.vStamp2 = R.get()
        self.vRes = R.get(16, 4)
        assert R.n <= 40
        self.base = 40
        self.ool = []

    def alloc(self): return Regs(self.base)
    def done(self, r): assert r.hi <= W2R, r.hi

    def mark(self, name):
        if not STAMP: return
        if name not in MARKS: MARKS.append(name)
        i = MARKS.index(name) + 3
        assert i < 31
        self.a(f"""s_memrealtime s[44:45]
        s_memtime s[46:47]
        s_waitcnt lgkmcnt(0)
        s_add_u32 m0, s{sST}, {i}
        s_nop 0
        v_writelane_b32 v{self.vStamp}, s44, m0
        v_writelane_b32 v{self.vStamp2}, s46, m0""")

    def wsetup(self, RS, sw=None):
        a = self.a; O = self.vOW
        a(f"v_mul_u32_u24 v{O[0]}, {RS}, v{self.vRow}\nv_add_u32 v{O[0]}, v{O[0]}, v{self.vSw if sw is None else sw}")
        for i in range(1, 4): a(f"v_add_u32 v{O[i]}, {i*(8*RS-1024)}, v{O[0]}")

    def wdma_s(self, RS, lds_imm):
        self.a(f"s_add_u32 m0, s{sMB}, {lds_imm}\ns_add_u32 s{sOW}, s{sOW}, {32*RS}")
    def wdma_v(self, srdW, i):
        self.a(f"buffer_load_dwordx4 v{self.vOW[i]}, {sr(srdW,4)}, s{sOW} offen offset:{i*1024} lds")

    def wdma(self, srdW, RS, lds_imm):
        a = self.a
        a(f"s_add_u32 m0, s{sMB}, {lds_imm}\ns_add_u32 s{sOW}, s{sOW}, {32*RS}")
        for i in range(4):
            a(f"buffer_load_dwordx4 v{self.vOW[i]}, {sr(srdW,4)}, s{sOW} offen offset:{i*1024} lds")

    def lstore(self, stores):
        a = self.a
        L = a.label("ls")
        a(f"s_cmp_eq_u32 s{sLOC}, 0\ns_cbranch_scc1 {L}_g")
        for s in stores: a(s)
        a(f"{L}_d:")
        def ool():
            a(f"{L}_g:")
            for s in stores: a(s + (" sc1" if s.startswith("buffer_store") else ""))
            a(f"s_branch {L}_d")
        self.ool.append(ool)

    def flag(self, soff, local):
        a = self.a; T = self.vT
        a(f"v_mov_b32 v{T[0]}, 1\nv_mov_b32 v{T[1]}, 0\ns_mov_b64 exec, 1")
        st = f"buffer_store_dword v{T[0]}, v{T[1]}, s[12:15], s{soff} offen"
        if local: self.lstore([st])
        else: a(st + " sc1")
        a("s_mov_b64 exec, -1")

    def poll(self, soff, vaddr, first_issued=False, pre=None):
        a = self.a; T = self.vT
        L = a.label("pl")
        if pre:
            for waitf, reg in pre:
                waitf()
                a(f"v_cmp_eq_u32 vcc, 0, v{reg}\ns_mov_b32 s24, 0\ns_nop 0\ns_cbranch_vccz {L}_go")
        elif first_issued:
            a(f"v_cmp_eq_u32 vcc, 0, v{T[3]}\ns_mov_b32 s24, 0\ns_nop 0\ns_cbranch_vccz {L}_go")
        else:
            a("s_mov_b32 s24, 0")
        a(f"""{L}:
        buffer_load_dword v{T[3]}, v{vaddr}, s[12:15], s{soff} offen sc1
        s_add_u32 s24, s24, 1
        s_waitcnt vmcnt(0)
        v_cmp_eq_u32 vcc, 0, v{T[3]}
        s_cmp_ge_u32 s24, {SPIN}
        s_cbranch_scc1 {L}_go
        s_cbranch_vccnz {L}
        {L}_go:""")

    def poll_lanes(self, n):
        self.a(f"v_min_u32 v{self.vPoll}, {n-1}, v{self.vL}\nv_lshlrev_b32 v{self.vPoll}, 7, v{self.vPoll}")

    def entry(self):
        a = self.a; T = self.vT; vL = self.vL; vOff = self.vOff
        kstart(a, NAME + "_kernel")
        if STAMP: a(f"s_memrealtime s[40:41]\ns_memtime s[42:43]\ns_mov_b32 s{sST}, 0")
        a(f"""s_load_dwordx2 s[{S_X}:{S_X+1}], s[0:1], {KA_X}
        s_load_dwordx2 s[{S_WQ}:{S_WQ+1}], s[0:1], {KA_WQKV}
        s_load_dwordx2 s[12:13], s[0:1], {KA_WS}
        s_load_dwordx2 s[{S_WO}:{S_WO+1}], s[0:1], {KA_WO}
        s_load_dwordx2 s[{S_W1}:{S_W1+1}], s[0:1], {KA_W1}
        s_load_dwordx2 s[{S_B1}:{S_B1+1}], s[0:1], {KA_B1}
        s_load_dwordx2 s[{S_W2}:{S_W2+1}], s[0:1], {KA_W2}
        s_load_dwordx2 s[{S_B2}:{S_B2+1}], s[0:1], {KA_B2}
        s_load_dwordx2 s[{S_OUT}:{S_OUT+1}], s[0:1], {KA_OUT}
        s_load_dwordx2 s[{S_DBG}:{S_DBG+1}], s[0:1], {KA_DBG}
        s_cmp_ge_u32 s2, 256
        s_cbranch_scc1 L_kb_end
        v_lshrrev_b32 v{T[0]}, 6, v0
        v_and_b32 v{vL}, 63, v0
        s_and_b32 s{sJ}, s2, 7
        v_readfirstlane_b32 s{sW}, v{T[0]}
        s_lshr_b32 s{sMm}, s2, 3
        v_lshlrev_b32 v{vOff}, 4, v{vL}
        s_lshl_b32 s{sRB}, s{sJ}, 2
        s_and_b32 s24, s{sMm}, 3
        s_add_u32 s{sRB}, s{sRB}, s24
        s_lshr_b32 s{sCT}, s{sMm}, 2""")
        srd(a, S_X, 2048*512*2); srd(a, S_WQ, 512*1536*2)
        r = self.alloc()
        X = r.get(64, 4); tmp = r.get(8, 4); dum = r.get(4, 4); CPR = r.get(8, 2)
        vS = [r.get(2), r.get(2)]; vOX = [r.get(), r.get()]; vWX = r.get(); vOne = r.get()
        a(f"""v_lshrrev_b32 v{self.vRow}, 3, v{vL}
        v_and_b32 v{T[2]}, 7, v{vL}
        v_lshlrev_b32 v{T[3]}, 4, v{T[2]}
        v_lshl_add_u32 v{vOX[0]}, v{self.vRow}, 10, v{T[3]}
        v_add_u32 v{vOX[1]}, 8192, v{vOX[0]}
        s_lshl_b32 s26, s{sRB}, 16
        s_lshl_b32 s25, s{sW}, 14
        s_add_u32 s26, s26, s25
        s_mul_i32 s27, s2, 6144
        s_lshl_b32 s25, s{sW}, 11
        s_add_u32 s27, s27, s25
        s_waitcnt lgkmcnt(0)""")
        vm = VM(a)
        a(f"buffer_load_dwordx4 {vr(dum,4)}, v{vOff}, {sr(S_WQ,4)}, s27 offen")
        a(f"buffer_load_dwordx4 {vr(dum,4)}, v{vOff}, {sr(S_WQ,4)}, s27 offen offset:1024")
        vm.add('d', 2)
        for i in range(8):
            a(f"""s_add_u32 s24, s{sCT}, {i}
            s_and_b32 s24, s24, 7
            s_lshl_b32 s24, s24, 7
            s_add_u32 s24, s24, s26""")
            for rg in range(2):
                a(f"buffer_load_dwordx4 {vr(X+32*rg+4*i,4)}, v{vOX[rg]}, {sr(S_X,4)}, s24 offen")
            vm.add(('x', i), 2)
        srd(a, S_WS, WS_SIZE); srd(a, S_WO, 512*512*2); srd(a, S_W1, 2048*1792*2); srd(a, S_B1, 1792*2)
        srd(a, S_W2, 1792*2048*2); srd(a, S_B2, 2048*2); srd(a, S_OUT, 2048*512*2); srd(a, S_DBG, 256)
        a(f"""s_and_b32 s24, s{sMm}, 3
        s_and_b32 s25, s{sJ}, 1
        s_lshl_b32 s25, s25, 2
        s_add_u32 s{sDT}, s25, s24
        s_lshr_b32 s25, s{sJ}, 1
        s_mul_i32 s25, s25, 7
        s_min_u32 s26, s{sCT}, 6
        s_add_u32 s{sFT}, s25, s26
        s_lshr_b32 s{sSI}, s{sW}, 1
        s_and_b32 s{sRH}, s{sW}, 1
        s_mov_b32 s{sLOC}, 0
        s_mov_b32 s{sLO}, 0
        v_mov_b32 v{self.vStamp}, 0
        v_mov_b32 v{self.vStamp2}, 0""")
        a(f"""v_and_b32 v{T[0]}, 7, v{vL}
        v_lshlrev_b32 v{T[0]}, 7, v{T[0]}
        v_bfe_u32 v{T[1]}, v{vL}, 3, 1
        v_lshl_add_u32 v{T[0]}, v{T[1]}, 24, v{T[0]}
        v_mov_b32 v{tmp}, 0
        s_lshl_b32 s24, s2, 12
        s_lshl_b32 s25, s{sW}, 10
        s_add_u32 s24, s24, s25
        s_add_u32 s24, s24, {WS_FL}
        s_mov_b64 exec, 0xffff
        buffer_store_dword v{tmp}, v{T[0]}, s[12:15], s24 offen sc1
        s_mov_b64 exec, -1
        v_and_b32 v{T[0]}, 31, v{vL}
        v_lshlrev_b32 v{T[0]}, 3, v{T[0]}
        v_lshrrev_b32 v{T[1]}, 5, v{vL}
        v_lshl_add_u32 v{T[0]}, v{T[1]}, 24, v{T[0]}
        v_mov_b32 v{tmp+2}, -1
        v_mov_b32 v{tmp+3}, -1
        s_lshl_b32 s24, s2, 10
        s_lshl_b32 s25, s{sW}, 8
        s_add_u32 s24, s24, s25
        s_add_u32 s24, s24, {WS_EX}
        buffer_store_dwordx2 {vr(tmp+2,2)}, v{T[0]}, s[12:15], s24 offen sc1""")
        vm.add('z', 2)
        self.setup_consts()
        self.qkv_setup()
        for c in range(NQA): self.qkv_wdma(c); vm.add(('w', c), 2)
        a(f"""v_lshrrev_b32 v{T[0]}, 1, v{T[2]}
        v_mul_u32_u24 v{vWX}, {XBS}, v{T[0]}
        v_and_b32 v{T[0]}, 1, v{T[2]}
        v_lshl_add_u32 v{vWX}, v{T[0]}, 9, v{vWX}
        v_lshl_add_u32 v{vWX}, v{self.vRow}, 4, v{vWX}
        s_mul_i32 s24, s{sSI}, {32*XBS}
        s_lshl_b32 s25, s{sRH}, 8
        s_add_u32 s24, s24, s25
        v_add_u32 v{vWX}, s24, v{vWX}
        v_mov_b32 v{vOne}, {ONES:#x}""")
        for rg in range(2): a(f"v_mov_b32 v{vS[rg]}, 0\nv_mov_b32 v{vS[rg]+1}, 0")
        for i in range(8):
            if i % 2 == 0: vm.wait({('x', i+1)})
            for rg in range(2):
                for j in range(4):
                    x = X+32*rg+4*i+j
                    a(f"v_dot2_f32_bf16 v{vS[rg]}, v{x}, v{vOne}, v{vS[rg]}")
                    a(f"v_dot2_f32_bf16 v{vS[rg]+1}, v{x}, v{x}, v{vS[rg]+1}")
        self.mark("x.got")
        for c in range(NQA, NQB): self.qkv_wdma(c); vm.add(('w', c), 2)
        a("s_nop 2")
        for ctl in ("quad_perm:[1,0,3,2]", "quad_perm:[2,3,0,1]", "row_half_mirror"):
            for rg in range(2):
                for k in range(2):
                    a(f"v_add_f32_dpp v{vS[rg]+k}, v{vS[rg]+k}, v{vS[rg]+k} {ctl} row_mask:0xf bank_mask:0xf")
        for rg in range(2):
            sx, sy = vS[rg], vS[rg]+1
            a(f"""v_mul_f32 v{sx}, {fhex(1/512)}, v{sx}
            v_mul_f32 v{sy}, {fhex(1/512)}, v{sy}
            v_fma_f32 v{sy}, -v{sx}, v{sx}, v{sy}
            v_max_f32 v{sy}, 0, v{sy}
            v_add_f32 v{sy}, {fhex(EPS)}, v{sy}
            v_rsq_f32 v{sy}, v{sy}
            s_nop 0
            v_mul_f32 v{sx}, v{sx}, v{sy}""")
        nxt = [NQB]
        for i in range(8):
            a(f"""s_add_u32 s24, s{sCT}, {i}
            s_and_b32 s24, s24, 7
            s_mul_i32 s24, s24, {4*XBS}
            v_add_u32 v{T[0]}, s24, v{vWX}""")
            for rg in range(2):
                x = X+32*rg+4*i
                for j in range(4):
                    a(f"v_lshlrev_b32 v{tmp+2*j}, 16, v{x+j}\nv_and_b32 v{tmp+2*j+1}, 0xffff0000, v{x+j}")
                for j in range(4):
                    a(f"v_pk_fma_f32 {vr(tmp+2*j,2)}, {vr(tmp+2*j,2)}, {vr(vS[rg],2)}, {vr(vS[rg],2)} op_sel:[0,1,0] op_sel_hi:[1,1,0] neg_lo:[0,0,1] neg_hi:[0,0,1]")
                for j in range(4):
                    a(f"v_cvt_pk_bf16_f32 v{x+j}, v{tmp+2*j}, v{tmp+2*j+1}")
                a(f"ds_write_b128 v{T[0]}, {vr(x,4)} offset:{rg*128}")
            if nxt[0] < 11:
                self.qkv_wdma(nxt[0]); vm.add(('w', nxt[0]), 2); nxt[0] += 1
        assert nxt[0] == 11
        a("s_waitcnt lgkmcnt(0)")
        self.mark("ln.done")
        self.done(r)
        return vm

    def setup_consts(self):
        a = self.a; T = self.vT; vL = self.vL
        a(f"""v_bfe_u32 v{T[1]}, v{vL}, 4, 1
        v_lshlrev_b32 v{T[1]}, 2, v{T[1]}
        v_xor_b32 v{T[1]}, v{T[1]}, v{vL}
        v_and_b32 v{T[1]}, 7, v{T[1]}
        v_lshlrev_b32 v{self.vSw}, 4, v{T[1]}
        v_bfe_u32 v{T[1]}, v{vL}, 2, 2
        v_lshlrev_b32 v{T[0]}, 7, v{T[1]}
        v_and_b32 v{T[1]}, 3, v{vL}
        v_lshl_add_u32 v{T[0]}, v{T[1]}, 3, v{T[0]}
        v_bfe_u32 v{T[1]}, v{vL}, 4, 1
        v_lshl_add_u32 v{T[0]}, v{T[1]}, 5, v{T[0]}
        v_bfe_u32 v{T[1]}, v{vL}, 3, 1
        v_lshl_add_u32 v{T[0]}, v{T[1]}, 6, v{T[0]}
        v_lshrrev_b32 v{T[1]}, 5, v{vL}
        v_lshl_add_u32 v{self.vTr}, v{T[1]}, 9, v{T[0]}
        s_lshl_b32 s24, s{sRH}, 8
        v_xor_b32 v{self.vOffA}, s24, v{self.vOff}
        s_mul_i32 s24, s{sW}, 6144
        s_add_u32 s24, s24, {RED}
        v_add_u32 v{self.vRedR}, s24, v{self.vOff}""")
        for i in range(1, 4):
            a(f"""s_xor_b32 s24, s{sW}, {i}
            s_mul_i32 s24, s24, 6144
            s_add_u32 s24, s24, {RED + (i-1)*2048}
            v_add_u32 v{self.vRedW[i-1]}, s24, v{self.vOff}""")

    def init_arrive(self):
        a = self.a; T = self.vT
        L = a.label("ia")
        a(f"""s_cmp_lg_u32 s{sW}, 0
        s_cbranch_scc1 {L}
        s_getreg_b32 s24, hwreg(HW_REG_XCC_ID, 0, 4)
        s_mul_i32 s25, s24, s24
        s_lshl_b32 s25, s25, 18
        s_lshl_b32 s24, s24, 8
        s_add_u32 s24, s24, s25
        s_add_u32 s24, s24, 1
        v_mov_b32 v{T[0]}, s24
        s_and_b32 s24, s{sJ}, 1
        s_lshl_b32 s24, s24, 7
        s_lshr_b32 s25, s{sJ}, 1
        s_lshl_b32 s25, s25, 2
        s_add_u32 s24, s24, s25
        v_mov_b32 v{T[1]}, 0
        s_mov_b64 exec, 1
        buffer_atomic_add v{T[0]}, v{T[1]}, {sr(S_DBG,4)}, s24 offen sc1
        s_mov_b64 exec, -1
        {L}:""")

    def init_addr(self):
        a = self.a; T = self.vT; vL = self.vL
        a(f"""v_and_b32 v{T[0]}, 1, v{vL}
        v_lshlrev_b32 v{T[0]}, 7, v{T[0]}
        v_bfe_u32 v{T[1]}, v{vL}, 1, 2
        v_lshl_add_u32 v{self.vPoll}, v{T[1]}, 2, v{T[0]}""")

    def init_wait(self):
        a = self.a; T = self.vT
        L = a.label("iw")
        a(f"""s_mov_b32 s24, 0
        {L}:
        v_and_b32 v{T[0]}, 255, v{T[3]}
        v_cmp_ne_u32 vcc, 32, v{T[0]}
        s_add_u32 s24, s24, 1
        s_cmp_ge_u32 s24, {SPIN}
        s_cbranch_vccz {L}_go
        s_cbranch_scc1 {L}_go
        buffer_load_dword v{T[3]}, v{self.vPoll}, {sr(S_DBG,4)}, 0 offen sc1
        s_waitcnt vmcnt(0)
        s_branch {L}
        {L}_go:
        v_readlane_b32 s24, v{T[3]}, s{sJ}
        s_nop 0
        s_bfe_u32 s25, s24, 0xa0008
        s_mul_i32 s25, s25, s25
        s_lshr_b32 s30, s24, 18
        s_lshl_b32 s30, s30, 5
        s_cmp_eq_u32 s25, s30
        s_cselect_b32 s{sLOC}, 1, 0
        s_and_b32 s24, s24, 255
        s_cmp_eq_u32 s24, 32
        s_cselect_b32 s{sLOC}, s{sLOC}, 0""")
        if FORCE_GLOBAL: a(f"s_mov_b32 s{sLOC}, 0")

    def c_table(self, tmp):
        a = self.a; T = self.vT; vL = self.vL
        L = a.label("ct")
        a(f"""s_cmp_lg_u32 s{sLO}, 0
        s_cbranch_scc1 {L}
        v_and_b32 v{T[0]}, 31, v{vL}
        v_lshrrev_b32 v{T[1]}, 5, v{vL}
        v_mul_u32_u24 v{T[1]}, {16*6144}, v{T[1]}
        v_lshl_add_u32 v{T[1]}, v{T[0]}, 3, v{T[1]}
        s_min_u32 s26, s{sW}, 2
        s_lshl_b32 s24, s26, 11
        s_lshl_b32 s25, s{sCT}, 8
        s_add_u32 s24, s24, s25
        s_add_u32 s24, s24, {WS_CP}""")
        for i in range(16):
            a(f"buffer_load_dwordx2 {vr(tmp+2*i,2)}, v{T[1]}, s[12:15], s24 offen sc1\ns_add_u32 s24, s24, 6144")
        a("s_waitcnt vmcnt(0)")
        for i in range(1, 16):
            a(f"v_pk_add_f32 {vr(tmp,2)}, {vr(tmp,2)}, {vr(tmp+2*i,2)}")
        half_sum(a, tmp, T[1]); half_sum(a, tmp+1, T[1])
        a(f"""s_lshl_b32 s24, s26, 8
        s_add_u32 s24, s24, {T_C}
        v_lshlrev_b32 v{T[0]}, 3, v{T[0]}
        v_add_u32 v{T[0]}, s24, v{T[0]}
        ds_write_b64 v{T[0]}, {vr(tmp,2)}
        s_waitcnt lgkmcnt(0)
        {L}:""")

    def qgroup(self, i): return 2*i if i < 8 else 2*(i-8)+1
    def qkv_setup(self):
        a = self.a
        a(f"""v_mul_u32_u24 v{self.vOW[0]}, 3072, v{self.vRow}
        v_add_u32 v{self.vOW[0]}, v{self.vOW[0]}, v{self.vSw}
        v_add_u32 v{self.vOW[1]}, {8*3072-1024}, v{self.vOW[0]}
        s_mul_i32 s{sOW}, s{sW}, {8*3072}
        s_lshl_b32 s24, s{sCT}, 7
        s_add_u32 s{sOA}, s{sOW}, s24
        s_add_u32 s{sOW}, s{sOA}, s{sOW}
        s_lshl_b32 s{sMB}, s{sW}, 11
        s_add_u32 s{sMB}, s{sMB}, {WR}""")
    def qkv_wdma(self, i):
        a = self.a
        if i < 16:
            a(f"""s_add_u32 m0, s{sMB}, {(i % 11)*8192}
            s_add_u32 s24, s{sOA}, {self.qgroup(i)*32*3072 + 1024}
            buffer_load_dwordx4 v{self.vOW[0]}, {sr(S_WQ,4)}, s24 offen lds
            buffer_load_dwordx4 v{self.vOW[0]}, {sr(S_WQ,4)}, s24 offen offset:1024 lds""")
        else:
            a(f"""s_add_u32 m0, s{sMB}, {(i % 11)*8192}
            s_add_u32 s24, s{sOW}, {(i-16)*64*3072}
            buffer_load_dwordx4 v{self.vOW[0]}, {sr(S_WQ,4)}, s24 offen lds
            buffer_load_dwordx4 v{self.vOW[1]}, {sr(S_WQ,4)}, s24 offen offset:1024 lds""")
    def qkv_xdma(self, i):
        g = self.qgroup(i)
        self.a(f"""s_add_u32 m0, s31, {2*g*XBS}
        s_add_u32 s24, s{sOX}, {g*2048}
        buffer_load_dwordx4 v{self.vOff}, s[12:15], s24 offen sc1 lds""")

    def phase_qkv(self, layer, vm, nw0):
        a = self.a; T = self.vT; vL = self.vL; vOff = self.vOff
        r = self.alloc()
        accK, accV, accQ = [r.get(16, 4) for _ in range(3)]
        fr = r.get(36, 4); tb = r.get(24, 4); vSx = r.get(2)
        vAX = r.get(); vA1 = [r.get(), r.get()]; vO1 = r.get(); vO2 = r.get(); vCv = r.get(); vRq = r.get()
        tq = fr + 24
        sCH = sRH
        LO = layer*LSTR
        nw = [nw0]; nx = [16]
        if layer == 1:
            a(f"""s_lshl_b32 s24, s{sRB}, 1
            s_add_u32 s24, s24, s{sSI}
            s_lshl_b32 s24, s24, 5
            s_add_u32 s24, s24, s{sRH}
            s_lshl_b32 s{sOX}, s24, 10
            s_add_u32 s{sOX}, s{sOX}, {WS_XF}
            s_lshl_b32 s25, s24, 7
            s_add_u32 s25, s25, {FL_X}
            s_sub_u32 s26, s24, s{sRH}
            s_lshl_b32 s26, s26, 7
            s_add_u32 s26, s26, {FL_X + 256}
            s_lshl_b32 s31, s{sSI}, 5
            s_add_u32 s31, s31, s{sRH}
            s_mul_i32 s31, s31, {XBS}
            v_min_u32 v{self.vPoll}, 7, v{vL}
            v_lshlrev_b32 v{self.vPoll}, 9, v{self.vPoll}""")
            self.poll(25, self.vPoll)
            self.flag(sFb, True)
            vm.ops = ['f']
            self.mark("XA.got")
            for i in range(8):
                self.qkv_xdma(i); vm.add(('x', i))
            nx[0] = 8
            a(f"""v_min_u32 v{T[0]}, 15, v{vL}
            v_lshrrev_b32 v{T[1]}, 1, v{T[0]}
            v_and_b32 v{T[0]}, 1, v{T[0]}
            v_lshlrev_b32 v{T[0]}, 7, v{T[0]}
            v_lshl_add_u32 v{self.vPoll}, v{T[1]}, 9, v{T[0]}
            buffer_load_dword v{T[3]}, v{self.vPoll}, s[12:15], s26 offen sc1
            v_and_b32 v{T[0]}, 31, v{vL}
            v_lshrrev_b32 v{T[1]}, 5, v{vL}
            v_lshlrev_b32 v{vO1}, 4, v{T[0]}
            v_lshl_add_u32 v{vO1}, v{T[1]}, 11, v{vO1}""")
            vm.add('pb')
        def tr_addr(hs):
            a(f"""s_lshl_b32 s24, s{sCH}, 6
            v_and_b32 v{T[0]}, 0x1ff, v{self.vTr}
            v_xor_b32 v{T[0]}, s24, v{T[0]}
            v_lshrrev_b32 v{T[1]}, 5, v{vL}
            v_lshl_add_u32 v{T[0]}, v{T[1]}, {hs}, v{T[0]}
            v_add_u32 v{vA1[0]}, {WR}, v{T[0]}
            v_add_u32 v{vA1[1]}, {WR+65536}, v{T[0]}""")
        tr_addr(11)
        a(f"s_mul_i32 s24, s{sSI}, {32*XBS}\nv_add_u32 v{vAX}, s24, v{vOff}")
        def chunk(n): return n >> 1 if n < 32 else 16 + ((n-32) >> 2)
        def buf(n): return fr + 12*(n % 3) if n < 32 else fr + (0, 16, 8)[(n-32) % 3]
        def rd(n):
            c = chunk(n); so = (c % 11)*8192; hb, so = so >> 16, so & 0xffff
            f = buf(n)
            if n < 32:
                t = n & 1; ks = 2*self.qgroup(c) + t
                a(f"ds_read_b128 {vr(f,4)}, v{vAX} offset:{ks*XBS}")
                for g in range(2):
                    a(f"ds_read_b64_tr_b16 {vr(f+4+4*g,2)}, v{vA1[hb]} offset:{so+t*4096+g*1024}")
                    a(f"ds_read_b64_tr_b16 {vr(f+6+4*g,2)}, v{vA1[hb]} offset:{so+t*4096+g*1024+512}")
            else:
                t = (n-32) & 3
                a(f"ds_read_b128 {vr(f,4)}, v{vAX} offset:{(n-32)*XBS}")
                a(f"ds_read_b64_tr_b16 {vr(f+4,2)}, v{vA1[hb]} offset:{so+t*2048}")
                a(f"ds_read_b64_tr_b16 {vr(f+6,2)}, v{vA1[hb]} offset:{so+t*2048+512}")
        def nrd(n): return 0 if n >= 64 else (5 if n < 32 else 3)
        def sync(i):
            tags = {('x', i), ('w', i), ('x', i+1), ('w', i+1)}
            assert nw[0] > i+1 and (i >= 16 or nx[0] > i+1)
            if layer == 0 and i == 0: tags.add('z')
            vm.wait(tags); a("s_barrier")
            if layer == 0 and i == 0: self.init_arrive()
            if layer == 1 and i == XBS_AT:
                vm.wait({'pb'})
                self.poll(26, self.vPoll, first_issued=True)
                for k in range(8, 16):
                    self.qkv_xdma(k); vm.add(('x', k))
                nx[0] = 16
                for k in range(4):
                    a(f"buffer_load_dwordx4 {vr(tb+4*k,4)}, v{vO1}, s[12:15], s{sPb} offen offset:{k*512} sc1")
                vm.add('st', 4)
            cnt = 0
            while nw[0] < 24 and nw[0] - 11 <= i - 2 and cnt < QISS:
                self.qkv_wdma(nw[0]); vm.add(('w', nw[0]), 2); nw[0] += 1; cnt += 1
        def stats():
            vm.wait({'st'})
            self.sum8(tb, vSx)
            a(f"""v_mul_f32 v{vSx}, {fhex(1/512)}, v{vSx}
            v_mul_f32 v{vSx+1}, {fhex(1/512)}, v{vSx+1}
            v_fma_f32 v{vSx+1}, -v{vSx}, v{vSx}, v{vSx+1}
            v_max_f32 v{vSx+1}, 0, v{vSx+1}
            v_add_f32 v{vSx+1}, {fhex(EPS)}, v{vSx+1}
            v_rsq_f32 v{vSx+1}, v{vSx+1}
            v_and_b32 v{T[1]}, 31, v{vL}
            v_lshlrev_b32 v{T[1]}, 2, v{T[1]}
            s_lshl_b32 s24, s{sW}, 8
            s_add_u32 s24, s24, {T_MU}
            v_add_u32 v{T[0]}, s24, v{T[1]}
            ds_write_b32 v{T[0]}, v{vSx}
            ds_write_b32 v{T[0]}, v{vSx+1} offset:128
            v_mul_f32 v{vRq}, {fhex(QSCALE)}, v{vSx+1}
            v_lshrrev_b32 v{T[2]}, 5, v{vL}
            v_lshlrev_b32 v{T[2]}, 4, v{T[2]}
            v_add_u32 v{T[3]}, s24, v{T[2]}
            s_lshl_b32 s24, s{sCH}, 7
            s_add_u32 s24, s24, {T_C}
            v_add_u32 v{T[2]}, s24, v{T[2]}
            v_add_u32 v{T[1]}, s24, v{T[1]}
            ds_read_b32 v{vCv}, v{T[1]} offset:512""")
            for q in range(4): a(f"ds_read_b128 {vr(tb+8+4*q,4)}, v{T[2]} offset:{256+q*32}")
        def cpart_ld():
            a(f"""s_min_u32 s30, s{sW}, 2
            s_mul_i32 s31, s{sRB}, {16*3072}
            s_lshl_b32 s24, s30, 10
            s_add_u32 s31, s31, s24
            s_lshl_b32 s24, s{sCT}, 7
            s_add_u32 s31, s31, s24
            v_lshrrev_b32 v{T[0]}, 5, v{vL}
            v_mul_u32_u24 v{T[0]}, {8*3072}, v{T[0]}
            v_and_b32 v{T[1]}, 31, v{vL}
            v_lshl_add_u32 v{T[0]}, v{T[1]}, 2, v{T[0]}""")
            for i in range(8):
                a(f"buffer_load_dword v{tb+i}, v{T[0]}, {sr(S_WQ,4)}, s31 offen\ns_add_u32 s31, s31, 3072")
            vm.add('cp', 8)
            a(f"""v_lshlrev_b32 v{T[1]}, 10, v{T[1]}
            v_lshrrev_b32 v{T[0]}, 5, v{vL}
            v_lshl_add_u32 v{T[1]}, v{T[0]}, 3, v{T[1]}
            s_lshl_b32 s24, s{sRB}, 16
            s_lshl_b32 s25, s{sSI}, 15
            s_add_u32 s24, s24, s25
            s_lshl_b32 s25, s{sCT}, 7
            s_add_u32 s24, s24, s25
            s_lshl_b32 s25, s{sRH}, 5
            s_add_u32 s24, s24, s25""")
            for i, o in enumerate((0, 16, 64, 80)):
                a(f"buffer_load_dwordx2 {vr(self.vRes+2*i,2)}, v{T[1]}, {sr(S_X,4)}, s24 offen offset:{o}")
            vm.add('rs', 4)
        def cpart_st():
            vm.wait({'cp'})
            a(f"v_mov_b32 v{vSx}, 0\nv_mov_b32 v{vSx+1}, 0")
            for i in range(8):
                a(f"""v_lshlrev_b32 v{T[0]}, 16, v{tb+i}
                v_and_b32 v{T[1]}, 0xffff0000, v{tb+i}
                v_add_f32 v{vSx}, v{vSx}, v{T[0]}
                v_add_f32 v{vSx+1}, v{vSx+1}, v{T[1]}""")
            half_sum(a, vSx, T[0]); half_sum(a, vSx+1, T[0])
            a(f"""s_mul_i32 s31, s{sRB}, 6144
            s_lshl_b32 s24, s30, 11
            s_add_u32 s31, s31, s24
            s_lshl_b32 s24, s{sCT}, 8
            s_add_u32 s31, s31, s24
            s_add_u32 s31, s31, {WS_CP}
            v_and_b32 v{T[1]}, 31, v{vL}
            v_lshlrev_b32 v{T[1]}, 3, v{T[1]}
            buffer_store_dwordx2 {vr(vSx,2)}, v{T[1]}, s[12:15], s31 offen sc1""")
            vm.add('cs')
        def lines(ls): return lambda: [a(x) for x in ls]
        def pack(A): return [f"v_cvt_pk_bf16_f32 v{A+i}, v{A+2*i}, v{A+2*i+1}" for i in range(8)]
        def stK():
            a(f"buffer_store_dwordx4 {vr(accK,4)}, v{vO1}, s[12:15], s28 offen sc1")
            a(f"buffer_store_dwordx4 {vr(accK+4,4)}, v{vO1}, s[12:15], s29 offen sc1"); vm.add('sk', 2)
        def stV():
            a(f"buffer_store_dwordx4 {vr(accV,4)}, v{vO2}, s[12:15], s28 offen offset:1024 sc1")
            a(f"buffer_store_dwordx4 {vr(accV+4,4)}, v{vO2}, s[12:15], s28 offen offset:1536 sc1"); vm.add('sv', 2)
        def addr_setup():
            qkv_store_setup(a, sCT, sCH, sRB, sSI, LO)
            k_lane_off(a, vO1, vL, T[1]); v_lane_off(a, vO2, vL, T[1])
        side = {}
        def at(n, f): side.setdefault(n, []).append(f)
        at(26, addr_setup)
        if layer == 0:
            at(34, lines(pack(accK))); at(34, stK); at(35, lines(pack(accV))); at(35, stV)
            at(44, cpart_ld); at(58, cpart_st)
            at(50, lambda: (self.init_addr(), a(f"buffer_load_dword v{T[3]}, v{self.vPoll}, {sr(S_DBG,4)}, 0 offen sc1"), vm.add('in')))
        else:
            at(23, stats)
            at(33, lines([f"ds_read_b128 {vr(tq+4*q,4)}, v{T[3]} offset:{q*32}" for q in range(4)]))
            at(34, lines([f"v_fma_f32 v{accK+i}, -v{vSx}, v{tb+8+i}, v{accK+i}" for i in range(16)]
                         + [f"ds_read_b128 {vr(tb+8+4*q,4)}, v{T[3]} offset:{128+q*32}" for q in range(4)]))
            at(35, lines([f"v_mul_f32 v{accK+i}, v{vSx+1}, v{accK+i}" for i in range(16)]))
            at(36, lines(pack(accK))); at(36, stK)
            at(37, lines([f"v_fma_f32 v{accV+i}, -v{tq+i}, v{vCv}, v{accV+i}" for i in range(16)]))
            at(38, lines([f"v_mul_f32 v{accV+i}, v{tb+8+i}, v{accV+i}" for i in range(16)]))
            at(39, lines(pack(accV))); at(39, stV)
            at(40, lines([f"ds_read_b128 {vr(tq+4*q,4)}, v{T[2]} offset:{q*32}" for q in range(4)]))
        sync(0); self.mark("q.c0"); rd(0); rd(1)
        for n in range(64):
            m = n + 2
            if m < 64:
                if m == 32:
                    pass
                if m not in (32, 33):
                    if chunk(m) != chunk(m-1) and chunk(m) % 2 == 0: sync(chunk(m))
                    rd(m)
            if n == 30: a("s_waitcnt lgkmcnt(5)")
            elif n == 31: a("s_waitcnt lgkmcnt(3)")
            else: a(f"s_waitcnt lgkmcnt({nrd(n+1)+nrd(n+2)})")
            f = buf(n)
            if n < 32:
                a(f"v_mfma_f32_32x32x16_bf16 {vr(accK,16)}, {vr(f+4,4)}, {vr(f,4)}, {vr(accK,16) if n else 0}")
                a(f"v_mfma_f32_32x32x16_bf16 {vr(accV,16)}, {vr(f,4)}, {vr(f+8,4)}, {vr(accV,16) if n else 0}")
            else:
                a(f"v_mfma_f32_32x32x16_bf16 {vr(accQ,16)}, {vr(f+4,4)}, {vr(f,4)}, {vr(accQ,16) if n > 32 else 0}")
            if n == 30:
                sync(16); tr_addr(10); rd(32)
            if n == 31:
                rd(33)
                self.mark("q.p1")
            for e in side.get(n, []): e()
        assert nw[0] == 24 and nx[0] == 16
        self.mark("q.loop")
        if layer == 0:
            vm.wait({'in'}); self.init_wait()
            for i in range(16): a(f"v_mul_f32 v{accQ+i}, {fhex(QSCALE)}, v{accQ+i}")
        else:
            a("s_nop 11")
            for i in range(16): a(f"v_fma_f32 v{accQ+i}, -v{vSx}, v{tq+i}, v{accQ+i}")
            for i in range(16): a(f"v_mul_f32 v{accQ+i}, v{vRq}, v{accQ+i}")
        for x in pack(accQ): a(x)
        self.lstore([f"buffer_store_dwordx4 {vr(accQ,4)}, v{vOff}, s[12:15], s26 offen",
                     f"buffer_store_dwordx4 {vr(accQ+4,4)}, v{vOff}, s[12:15], s27 offen"])
        a(f"""s_lshl_b32 s24, s{sCT}, 1
        s_add_u32 s24, s24, s{sCH}
        s_lshl_b32 s24, s24, 6
        s_lshl_b32 s25, s{sRB}, 1
        s_add_u32 s24, s24, s25
        s_add_u32 s24, s24, s{sSI}
        s_lshl_b32 s24, s24, 7
        s_add_u32 s{sFa}, s24, {FL_Q + LO}
        s_waitcnt vmcnt(0)""")
        self.flag(sFa, False)
        self.mark("Q.sig")
        if layer == 0:
            for i in range(7, -1, -1):
                a(f"v_and_b32 v{self.vRes+2*i+1}, 0xffff0000, v{self.vRes+i}\nv_lshlrev_b32 v{self.vRes+2*i}, 16, v{self.vRes+i}")
        else:
            a(f"s_mov_b32 s{sLO}, {LSTR}")
        a("s_barrier")
        self.done(r)

    def attention(self, layer):
        a = self.a; T = self.vT; vL = self.vL; vOff = self.vOff
        r = self.alloc()
        vQ = [r.get(4, 4) for _ in range(2)]
        vK = [r.get(4, 4) for _ in range(2)]
        vV = [r.get(8, 4) for _ in range(2)]
        vO = [r.get(16, 4) for _ in range(2)]
        vSb = [r.get(16, 4) for _ in range(3)]
        vAV = [r.get() for _ in range(4)]; vAK = r.get(); vIdx = r.get()
        self.at = (vQ, vK, vV, vO, vSb, vIdx)
        sKV, sKS, sKM = 28, 29, 30
        LO = layer*LSTR
        vm = VM(a)
        a(f"""s_lshl_b32 s{sKV}, s{sMm}, 17
        s_add_u32 s{sKV}, s{sKV}, {WS_KV + LO}
        s_lshl_b32 s{sKM}, s{sW}, 11
        s_add_u32 s{sKS}, s{sKV}, s{sKM}
        s_sub_u32 s{sKS}, s{sKS}, 8192
        s_add_u32 s{sKM}, s{sKM}, {KVR}
        s_lshl_b32 s27, s{sJ}, 2
        s_add_u32 s27, s27, s{sW}
        s_lshl_b32 s26, s{sMm}, 5
        s_add_u32 s26, s26, s27
        s_lshl_b32 s26, s26, 11
        s_add_u32 s26, s26, {WS_QF + LO}
        s_lshr_b32 s25, s{sMm}, 1
        s_lshl_b32 s25, s25, 13
        s_add_u32 s25, s25, {FL_Q + LO}
        v_and_b32 v{T[0]}, 15, v{vL}
        v_lshlrev_b32 v{T[0]}, 2, v{T[0]}
        v_add_u32 v{T[0]}, s{sW}, v{T[0]}
        s_lshl_b32 s24, s27, 1
        v_and_b32 v{T[1]}, 1, v{vL}
        v_add_u32 v{T[1]}, s24, v{T[1]}
        v_cmp_gt_u32 vcc, 16, v{vL}
        s_nop 1
        v_cndmask_b32 v{T[0]}, v{T[1]}, v{T[0]}, vcc
        v_lshlrev_b32 v{self.vPoll}, 7, v{T[0]}""")
        a(f"""v_and_b32 v{T[0]}, 1, v{vL}
        v_bfe_u32 v{T[1]}, v{vL}, 1, 1
        v_lshlrev_b32 v{T[2]}, 4, v{T[0]}
        v_lshl_add_u32 v{T[2]}, v{T[1]}, 6, v{T[2]}
        v_lshrrev_b32 v{T[1]}, 2, v{vL}
        v_lshl_add_u32 v{T[2]}, v{T[1]}, 9, v{T[2]}
        v_add_u32 v{T[2]}, {CONST}, v{T[2]}
        v_cmp_eq_u32 vcc, 0, v{T[0]}
        v_mov_b32 v{T[1]}, {ONES:#x}
        v_mov_b32 v{vIdx}, 0xdddd
        v_cndmask_b32 v{vK[0]}, 0, v{T[1]}, vcc
        v_cndmask_b32 v{vK[0]+1}, 0, v{T[1]}, vcc
        v_cndmask_b32 v{vK[0]+2}, 0, v{T[1]}, vcc
        v_cndmask_b32 v{vK[0]+3}, 0, v{T[1]}, vcc
        ds_write_b128 v{T[2]}, {vr(vK[0],4)}
        v_add_u32 v{vAK}, {KVR}, v{vOff}
        v_and_b32 v{T[0]}, 15, v{vL}
        v_lshlrev_b32 v{T[1]}, 4, v{T[0]}
        v_lshrrev_b32 v{T[2]}, 5, v{vL}
        v_lshl_add_u32 v{T[1]}, v{T[2]}, 8, v{T[1]}
        v_add_u32 v{T[1]}, {KVR+1024}, v{T[1]}
        v_add_u32 v{T[2]}, 4, v{T[0]}
        v_bfe_u32 v{T[2]}, v{T[2]}, 3, 1
        v_lshlrev_b32 v{T[2]}, 6, v{T[2]}
        v_and_b32 v{T[0]}, 11, v{T[0]}
        v_cmp_ne_u32 vcc, 0, v{T[0]}
        v_add_u32 v{T[2]}, {CONST}, v{T[2]}
        v_add_u32 v{T[3]}, 16, v{T[2]}
        v_cndmask_b32 v{T[2]}, v{T[2]}, v{T[3]}, vcc
        v_and_b32 v{T[0]}, 16, v{vL}
        v_cmp_ne_u32 vcc, 0, v{T[0]}""")
        for s_ in range(4):
            a(f"v_add_u32 v{T[3]}, {s_*8192}, v{T[1]}\ns_nop 0\nv_cndmask_b32 v{vAV[s_]}, v{T[3]}, v{T[2]}, vcc")
        for p in range(2):
            for i in range(16): a(f"v_mov_b32 v{vO[p]+i}, 0")
        a(f"s_lshl_b32 s{sMB}, s{sW}, 14")
        def su_w1():
            self.wsetup(3584)
            a(f"""s_mul_i32 s{sOW}, s{sW}, {512*3584}
            s_lshl_b32 s24, s{sFT}, 7
            s_add_u32 s{sOW}, s{sOW}, s24
            s_sub_u32 s{sOW}, s{sOW}, {32*3584}""")
        def su_w2():
            self.wsetup(4096)
            a(f"""s_mul_i32 s{sOW}, s{sW}, {448*4096}
            s_lshl_b32 s24, s{sRB}, 7
            s_add_u32 s{sOW}, s{sOW}, s24
            s_add_u32 s{sOW}, s{sOW}, {(256-32)*4096}""")
        def su_w2warm():
            self.wsetup(4096)
            a(f"""s_mul_i32 s{sOW}, s{sW}, {448*4096}
            s_lshl_b32 s24, s{sRB}, 7
            s_add_u32 s{sOW}, s{sOW}, s24
            s_lshl_b32 s24, s{sCT}, 17
            s_add_u32 s{sOW}, s{sOW}, s24
            s_sub_u32 s{sOW}, s{sOW}, {32*4096}""")
        def su_wo():
            a(f"""v_bfe_u32 v{T[0]}, v{vL}, 4, 1
            v_lshlrev_b32 v{T[0]}, 1, v{T[0]}
            v_xor_b32 v{T[0]}, v{T[0]}, v{vL}
            v_and_b32 v{T[0]}, 7, v{T[0]}
            v_lshlrev_b32 v{T[0]}, 4, v{T[0]}""")
            self.wsetup(1024, T[0])
            a(f"""s_lshl_b32 s{sOW}, s{sW}, 17
            s_lshl_b32 s24, s{sCT}, 7
            s_add_u32 s{sOW}, s{sOW}, s24
            s_sub_u32 s{sOW}, s{sOW}, {32*1024}""")
        def tw(xs):
            a(f"""{xs}
            v_xor_b32 v{self.vTW[0]}, s24, v{self.vTr}
            v_add_u32 v{self.vTW[0]}, s{sMB}, v{self.vTW[0]}
            v_xor_b32 v{self.vTW[1]}, 64, v{self.vTW[0]}""")
        groups = {}
        if layer == 0:
            su_w1(); tw(f"s_lshl_b32 s24, s{sW}, 5")
            for p in range(22):
                groups[p] = (su_w2 if p == 16 else None, S_W1 if p < 16 else S_W2, 3584 if p < 16 else 4096, (p % 4)*4096)
        for i in range(4): groups[25+i] = (su_wo if i == 0 else None, S_WO, 1024, i*4096)
        groups[24] = (su_w2warm, S_W2, 4096, None)
        def g_s(p):
            if p in groups:
                su, _, RS, lo = groups[p]
                if su: su()
                if lo is None: a(f"s_mov_b32 m0, 65536\ns_add_u32 s{sOW}, s{sOW}, {32*RS}")
                else: self.wdma_s(RS, lo)
        def g_v(p, i):
            if p in groups:
                self.wdma_v(groups[p][1], i); self.wdma_v(groups[p][1], i+1); vm.add(('s', p), 2)
        def g_rd(q):
            if q == 16: tw(f"s_lshl_b32 s24, s{sSI}, 6")
            for k in range(2):
                for wi in range(2):
                    for hh in range(2):
                        idx = (2*q+k)*8 + 4*wi + 2*hh
                        dst = f"a[{idx}:{idx+1}]" if q < 16 else vr(W2R + idx - 256, 2)
                        a(f"ds_read_b64_tr_b16 {dst}, v{self.vTW[wi]} offset:{(q%4)*4096+k*2048+hh*1024}")
        def kv_s(n): a(f"s_add_u32 m0, s{sKM}, {(n % 4)*8192}\ns_add_u32 s{sKS}, s{sKS}, 8192")
        def kv_v(n):
            if XNODMA and layer == 1 and n > 2:
                vm.add(('kv', n), 2); return
            a(f"""buffer_load_dwordx4 v{vOff}, s[12:15], s{sKS} offen sc1 lds
            buffer_load_dwordx4 v{vOff}, s[12:15], s{sKS} offen offset:1024 sc1 lds""")
            vm.add(('kv', n), 2)
        def rdK(t):
            if XNODS and layer == 1 and t > 1: return
            if t < 64: a(f"ds_read_b128 {vr(vK[t%2],4)}, v{vAK} offset:{(t&15)*2048}")
        def rdV(t, f):
            if (XNODS or XNOV) and layer == 1 and t > 1: return
            if t < 64: a(f"ds_read_b128 {vr(vV[t%2]+4*f,4)}, v{vAV[(t>>2)&3]} offset:{(t&3)*2048+512*f}")
        def qk(h):
            if h < 128: a(f"v_mfma_f32_32x32x16_bf16 {vr(vSb[h%3],16)}, {vr(vK[(h>>1)%2],4)}, {vr(vQ[h&1],4)}, 0")
        def pv(h, f): a(f"v_smfmac_f32_32x32x32_bf16 {vr(vO[h&1],16)}, {vr(vV[(h>>1)%2]+4*f,4)}, {vr(vSb[h%3]+8*f,8)}, v{vIdx}")
        def ex(h, i): a(f"v_exp_f32 v{vSb[h%3]+i}, v{vSb[h%3]+i}")
        def vcount(tags):
            last = max(i for i, t in enumerate(vm.ops) if t in tags)
            n = len(vm.ops) - 1 - last
            assert n < 64
            return n
        self.poll(25, self.vPoll)
        self.mark("Q.got")
        kv_s(0); kv_v(0)
        a(f"buffer_load_dwordx4 {vr(vQ[0],4)}, v{vOff}, s[12:15], s26 offen sc1")
        a(f"buffer_load_dwordx4 {vr(vQ[1],4)}, v{vOff}, s[12:15], s26 offen offset:1024 sc1"); vm.add('q', 2)
        kv_s(1); kv_v(1)
        a("s_waitcnt lgkmcnt(0)")
        vm.wait({'q'}); a("s_barrier")
        self.mark("at.start")
        rdK(0); rdK(1); rdV(0, 0); rdV(0, 1)
        kv_s(2); kv_v(2)
        a("s_waitcnt lgkmcnt(3)"); qk(0); qk(1)
        a("s_nop 10")
        for t in range(64):
            m, u = t >> 2, t & 3
            h = 2*t
            for i in range(3): ex(h, i)
            if h > 0: pv(h-1, 1)
            q = {1: 2*m-3, 3: 2*m-2}.get(u, -1)
            if layer == 0 and 0 <= q < 22:
                a(f"s_waitcnt vmcnt({vcount({('s', q)})}) lgkmcnt(0)"); g_rd(q)
            elif u == 2 and m+1 < 16 and not (XNOBAR and layer == 1):
                a(f"s_waitcnt vmcnt({vcount({('kv', m+1)})}) lgkmcnt(0)\ns_barrier")
            else:
                a("s_waitcnt lgkmcnt(0)")
            for i in range(3, 8): ex(h, i)
            qk(h+2); rdK(t+2)
            for i in range(8, 13): ex(h, i)
            pv(h, 0); rdV(t+1, 1)
            for i in range(13, 16): ex(h, i)
            h += 1
            for i in range(3): ex(h, i)
            pv(h-1, 1)
            if u == 0: g_s(2*m)
            elif u == 1: g_v(2*m, 2)
            elif u == 2:
                if m+3 < 16: kv_v(m+3)
            else: g_v(2*m+1, 0)
            for i in range(3, 8): ex(h, i)
            qk(h+2); rdV(t+1, 0)
            for i in range(8, 13): ex(h, i)
            pv(h, 0)
            if u == 0: g_v(2*m, 0)
            elif u == 1:
                if m+3 < 16: kv_s(m+3)
            elif u == 2: g_s(2*m+1)
            else: g_v(2*m+1, 2)
            for i in range(13, 16): ex(h, i)
        a("s_nop 1")
        pv(127, 1)
        self.done(r)

    def attention_epilogue(self):
        a = self.a; T = self.vT; vL = self.vL; vOff = self.vOff
        vQ, vK, vV, vO, vSb, vIdx = self.at
        sKV = 28
        a("L_at_epi:")
        self.mark("at.loop")
        a(f"""s_lshl_b32 s24, s27, 6
        s_add_u32 s24, s24, s{sMm}
        s_lshl_b32 s24, s24, 10
        s_add_u32 s24, s24, {WS_OF}
        s_add_u32 s{sSa}, s24, s{sLO}
        s_add_u32 s{sSb}, s{sSa}, 32768
        s_lshl_b32 s{sFa}, s27, 5
        s_add_u32 s{sFa}, s{sFa}, s{sMm}
        s_lshl_b32 s{sFa}, s{sFa}, 7
        s_add_u32 s{sFa}, s{sFa}, {FL_O}
        s_add_u32 s{sFa}, s{sFa}, s{sLO}
        s_mov_b32 s31, 0
        L_at_fin:""")
        vRc = vSb[0]
        a(f"""v_rcp_f32 v{vRc}, v{vO[0]+8}
        v_rcp_f32 v{vRc+1}, v{vO[1]+8}
        v_min_f32 v{vRc+2}, v{vO[0]+8}, v{vO[1]+8}
        v_max_f32 v{vRc+3}, v{vO[0]+8}, v{vO[1]+8}""")
        for p in range(2):
            for i in range(8): a(f"v_mul_f32 v{vO[p]+i}, v{vRc+p}, v{vO[p]+i}")
        a(f"""v_cmp_le_f32 vcc, {fhex(2.0**-60)}, v{vRc+2}
        s_mov_b64 s[24:25], vcc
        v_cmp_ge_f32 vcc, {fhex(2.0**60)}, v{vRc+3}
        s_and_b64 s[24:25], s[24:25], vcc""")
        for i in range(4):
            a(f"v_pk_add_f32 {vr(vRc+4+2*i,2)}, {vr(vO[0]+2*i,2)}, {vr(vO[0]+2*i,2)} neg_lo:[0,1] neg_hi:[0,1]")
        for i in range(4):
            a(f"v_pk_fma_f32 {vr(vRc+4+2*i,2)}, {vr(vO[1]+2*i,2)}, {vr(vRc+4+2*i,2)}, {vr(vRc+4+2*i,2)}")
        a(f"""v_pk_add_f32 {vr(vRc+4,2)}, {vr(vRc+4,2)}, {vr(vRc+6,2)}
        v_pk_add_f32 {vr(vRc+8,2)}, {vr(vRc+8,2)}, {vr(vRc+10,2)}
        v_pk_add_f32 {vr(vRc+4,2)}, {vr(vRc+4,2)}, {vr(vRc+8,2)}""")
        for p in range(2):
            for i in range(4): a(f"v_cvt_pk_bf16_f32 v{vK[p]+i}, v{vO[p]+2*i}, v{vO[p]+2*i+1}")
        a(f"""v_cmp_eq_f32 vcc, v{vRc+4}, v{vRc+5}
        s_and_b64 s[24:25], s[24:25], vcc
        s_cmp_eq_u64 s[24:25], -1
        s_cbranch_scc0 L_at_slow
        L_at_st:""")
        self.lstore([f"buffer_store_dwordx4 {vr(vK[0],4)}, v{vOff}, s[12:15], s{sSa} offen",
                     f"buffer_store_dwordx4 {vr(vK[1],4)}, v{vOff}, s[12:15], s{sSb} offen"])
        def slow():
            vM = vSb[1]; vC = vSb[2]; S = vSb[0]
            a(f"""L_at_slow:
            s_cmp_lg_u32 s31, 0
            s_cbranch_scc1 L_at_st
            v_and_b32 v{T[0]}, 15, v{vL}
            v_lshlrev_b32 v{T[0]}, 4, v{T[0]}
            v_lshrrev_b32 v{T[2]}, 5, v{vL}
            v_lshl_add_u32 v{T[2]}, v{T[2]}, 8, v{T[0]}
            s_mov_b32 s30, 0xffff
            s_mov_b32 s31, 0xffff""")
            for p in range(2):
                a(f"""v_mov_b32 v{vM}, 0xff800000
                s_mov_b32 s29, s{sKV}
                s_mov_b32 s24, 0
                L_at_max{p}:
                buffer_load_dwordx4 {vr(vK[0],4)}, v{vOff}, s[12:15], s29 offen sc1
                s_waitcnt vmcnt(0)
                v_mfma_f32_32x32x16_bf16 {vr(S,16)}, {vr(vK[0],4)}, {vr(vQ[p],4)}, 0
                s_nop 15""")
                for i in range(8): a(f"v_max3_f32 v{vM}, v{S+2*i}, v{S+2*i+1}, v{vM}")
                a(f"""s_add_u32 s29, s29, 2048
                s_add_u32 s24, s24, 1
                s_cmp_lt_u32 s24, 64
                s_cbranch_scc1 L_at_max{p}
                v_mov_b32 v{vM+1}, v{vM}
                s_nop 1
                v_permlane32_swap_b32 v{vM}, v{vM+1}
                s_nop 1
                v_max_f32 v{vM}, v{vM}, v{vM+1}""")
                for i in range(16): a(f"v_sub_f32 v{vC+i}, 0, v{vM}\nv_mov_b32 v{vO[p]+i}, 0")
                a(f"""s_mov_b32 s29, s{sKV}
                s_mov_b32 s24, 0
                L_at_sl{p}:
                buffer_load_dwordx4 {vr(vK[0],4)}, v{vOff}, s[12:15], s29 offen sc1
                s_mov_b64 exec, s[30:31]
                buffer_load_dwordx4 {vr(vV[0],4)}, v{T[2]}, s[12:15], s29 offen offset:1024 sc1
                buffer_load_dwordx4 {vr(vV[0]+4,4)}, v{T[2]}, s[12:15], s29 offen offset:1536 sc1
                s_mov_b64 exec, -1
                s_waitcnt vmcnt(0)
                v_mfma_f32_32x32x16_bf16 {vr(S,16)}, {vr(vK[0],4)}, {vr(vQ[p],4)}, {vr(vC,16)}
                s_nop 15""")
                for i in range(16): a(f"v_exp_f32 v{S+i}, v{S+i}")
                a(f"""s_nop 3
                v_smfmac_f32_32x32x32_bf16 {vr(vO[p],16)}, {vr(vV[0],4)}, {vr(S,8)}, v{vIdx}
                v_smfmac_f32_32x32x32_bf16 {vr(vO[p],16)}, {vr(vV[0]+4,4)}, {vr(S+8,8)}, v{vIdx}
                s_add_u32 s29, s29, 2048
                s_add_u32 s24, s24, 1
                s_cmp_lt_u32 s24, 64
                s_nop 15
                s_cbranch_scc1 L_at_sl{p}""")
            a("s_branch L_at_fin")
        self.ool.append(slow)

    def row_partials(self, pks, vSx, init=True):
        a = self.a; T = self.vT
        a(f"v_mov_b32 v{T[2]}, {ONES:#x}")
        if init: a(f"v_mov_b32 v{vSx}, 0\nv_mov_b32 v{vSx+1}, 0")
        for p in pks:
            a(f"v_dot2_f32_bf16 v{vSx}, v{p}, v{T[2]}, v{vSx}")
            a(f"v_dot2_f32_bf16 v{vSx+1}, v{p}, v{p}, v{vSx+1}")

    def sum8(self, pl, d):
        a = self.a
        for st in (8, 4, 2):
            for i in range(st):
                dst = (d + i) if st == 2 else (pl + i)
                a(f"v_add_f32 v{dst}, v{pl+i}, v{pl+st+i}")
        half_sum(a, d, self.vT[1]); half_sum(a, d+1, self.vT[1])

    def w2_lds_setup(self):
        a = self.a
        self.wsetup(4096)
        a(f"""s_mul_i32 s{sOW}, s{sW}, {448*4096}
        s_lshl_b32 s24, s{sRB}, 7
        s_add_u32 s{sOW}, s{sOW}, s24
        s_sub_u32 s{sOW}, s{sOW}, {32*4096}
        s_lshl_b32 s{sMB}, s{sW}, 15
        s_lshl_b32 s24, s{sSI}, 6
        v_xor_b32 v{self.vTW[0]}, s24, v{self.vTr}
        v_add_u32 v{self.vTW[0]}, s{sMB}, v{self.vTW[0]}
        v_xor_b32 v{self.vTW[1]}, 64, v{self.vTW[0]}""")

    def phase_wo(self):
        a = self.a; T = self.vT; vL = self.vL; vOff = self.vOff
        r = self.alloc()
        acc = r.get(16, 4); fr = r.get(24, 4); vId = r.get(8, 4); wp = r.get(64, 4)
        pl = wp; d2 = wp + 16
        vAW = r.get(); vAX = r.get(); vHO = r.get(); vEX = r.get(); vSx = r.get(2)
        self.poll_lanes(8)
        a(f"""s_lshl_b32 s25, s{sRB}, 5
        s_lshl_b32 s26, s{sW}, 3
        s_add_u32 s25, s25, s26
        s_lshl_b32 s25, s25, 7
        s_add_u32 s25, s25, {FL_O}
        s_add_u32 s25, s25, s{sLO}
        s_lshl_b32 s27, s{sRB}, 16
        s_lshl_b32 s26, s{sW}, 13
        s_add_u32 s27, s27, s26
        s_add_u32 s27, s27, {WS_OF}
        s_add_u32 s27, s27, s{sLO}
        s_add_u32 s28, s27, 32768
        s_add_u32 s26, s26, 65536
        v_bfe_u32 v{T[0]}, v{vL}, 4, 1
        v_and_b32 v{vAW}, {0xffffffff ^ 0x60:#x}, v{self.vTr}
        v_lshl_add_u32 v{vAW}, v{T[0]}, 6, v{vAW}
        v_bfe_u32 v{T[0]}, v{vL}, 3, 1
        v_xor_b32 v{T[0]}, s{sRH}, v{T[0]}
        v_lshl_add_u32 v{vAW}, v{T[0]}, 5, v{vAW}
        s_lshl_b32 s24, s{sSI}, 15
        s_add_u32 s24, s24, 65536
        v_add_u32 v{vAX}, s24, v{vOff}
        s_waitcnt vmcnt(0)""")
        self.flag(sFa, True)
        self.mark("O.sig")
        a("s_barrier")
        order = [8*w_ + 2*c + k for c in range(4) for w_ in range(4) for k in range(2)]
        for i in range(16, 32):
            ks = order[i]; f = wp + 4*(i-16)
            a(f"ds_read_b64_tr_b16 {vr(f,2)}, v{vAW} offset:{ks*2048}")
            a(f"ds_read_b64_tr_b16 {vr(f+2,2)}, v{vAW} offset:{ks*2048+1024}")
            if i % 4 == 3: a("s_waitcnt lgkmcnt(4)")
        for i in range(16): a(f"v_mov_b32 v{acc+i}, v{self.vRes+i}")
        self.poll(25, self.vPoll)
        self.mark("O.got")
        vm = VM(a)
        def odma(c):
            if c == 2: a("s_add_u32 s27, s27, 4096\ns_add_u32 s28, s28, 4096")
            for s_ in range(2):
                a(f"""s_add_u32 m0, s26, {s_*32768 + (c>>1)*4096}
                s_nop 0
                buffer_load_dwordx4 v{vOff}, s[12:15], s{27+s_} offen offset:{(c&1)*2048} sc1 lds
                buffer_load_dwordx4 v{vOff}, s[12:15], s{27+s_} offen offset:{(c&1)*2048+1024} sc1 lds""")
            vm.add(c, 4)
        odma(0); odma(1); odma(2)
        a(f"""v_and_b32 v{T[0]}, 15, v{vL}
        v_lshrrev_b32 v{T[1]}, 5, v{vL}
        v_lshl_add_u32 v{vHO}, v{T[1]}, 5, v{T[0]}
        s_lshl_b32 s24, s{sRH}, 4
        v_add_u32 v{vHO}, s24, v{vHO}
        v_lshlrev_b32 v{vHO}, 4, v{vHO}
        v_bfe_u32 v{T[0]}, v{vL}, 4, 1
        v_lshl_add_u32 v{vHO}, v{T[0]}, 17, v{vHO}
        v_and_b32 v{T[3]}, 31, v{vL}
        v_lshlrev_b32 v{vEX}, 4, v{T[3]}
        v_lshl_add_u32 v{vEX}, v{T[1]}, 11, v{vEX}
        v_lshlrev_b32 v{T[2]}, 2, v{T[1]}
        v_sub_u32 v{T[2]}, v{T[3]}, v{T[2]}
        v_mov_b32 v{T[0]}, 0x3f80
        v_mov_b32 v{T[1]}, 0x3f800000""")
        def ident(k):
            blk, m = k >> 2, k & 3
            pv_ = (0, 2, 8, 10)[m] + 16*blk
            a(f"""v_cmp_eq_u32 vcc, {pv_}, v{T[2]}
            v_cmp_eq_u32 s[24:25], {pv_+1}, v{T[2]}
            s_nop 0
            v_cndmask_b32 v{vId+k}, 0, v{T[0]}, vcc
            v_cndmask_b32 v{vId+k}, v{vId+k}, v{T[1]}, s[24:25]""")
        def fb(i): return fr + 8*(i % 3) if i < 16 else fr + 4*((i - 16 + 2) % 6)
        def rd(i):
            ks = order[i]; f = fb(i)
            a(f"ds_read_b128 {vr(f,4)}, v{vAX} offset:{ks*1024}")
            if i < 16:
                a(f"ds_read_b64_tr_b16 {vr(f+4,2)}, v{vAW} offset:{ks*2048}")
                a(f"ds_read_b64_tr_b16 {vr(f+6,2)}, v{vAW} offset:{ks*2048+1024}")
        def nr(i): return 0 if i >= 32 else (3 if i < 16 else 1)
        vm.wait({0}); a("s_barrier")
        self.mark("wo.c0")
        rd(0); rd(1)
        odma(3)
        issued = 2
        for i in range(32):
            ahead = 2 if i < 15 else 4
            while issued < 32 and issued <= i + ahead:
                if issued % 8 == 0:
                    vm.wait({issued//8}); a("s_barrier")
                rd(issued); issued += 1
            a(f"s_waitcnt lgkmcnt({sum(nr(k) for k in range(i+1, issued))})")
            f = fb(i)
            W_ = f + 4 if i < 16 else wp + 4*(i-16)
            a(f"v_mfma_f32_32x32x16_bf16 {vr(acc,16)}, {vr(W_,4)}, {vr(f,4)}, {vr(acc,16)}")
            if i < 8: ident(i)
        a("s_barrier")
        self.mark("wo.loop")
        self.w2_lds_setup()
        a(f"""s_lshl_b32 s26, s{sRB}, 1
        s_add_u32 s26, s26, s{sSI}
        s_lshl_b32 s28, s26, 12
        s_add_u32 s28, s28, {WS_EX}
        s_add_u32 s28, s28, s{sLO}
        s_lshl_b32 s25, s{sCT}, 9
        s_add_u32 s25, s25, s28
        s_lshl_b32 s24, s{sRH}, 3
        s_add_u32 s25, s25, s24""")
        for i in range(8): a(f"v_cvt_pk_bf16_f32 v{fr+i}, v{acc+2*i}, v{acc+2*i+1}")
        self.row_partials([fr+i for i in range(8)], vSx)
        a("s_nop 2")
        half_sum(a, vSx, T[0]); half_sum(a, vSx+1, T[0])
        L = a.label("ex")
        a(f"""v_min_u32 v{vSx}, -2, v{vSx}
        v_min_u32 v{vSx+1}, -2, v{vSx+1}
        s_mov_b32 exec_hi, 0""")
        self.lstore([f"buffer_store_dwordx2 {vr(vSx,2)}, v{vEX}, s[12:15], s25 offen"])
        a("s_mov_b64 exec, -1")
        for i in range(16): a(f"v_mov_b32 v{self.vRes+i}, v{acc+i}")
        for i in range(NW2A): self.wdma(S_W2, 4096, i*4096)
        a(f"s_mov_b32 s24, 0\n{L}_poll:")
        for k in range(4):
            a(f"buffer_load_dwordx4 {vr(pl+4*k,4)}, v{vEX}, s[12:15], s28 offen offset:{k*512} sc1")
        a("s_add_u32 s24, s24, 1\ns_waitcnt vmcnt(0)")
        a(f"v_max3_u32 v{T[1]}, v{pl}, v{pl+1}, v{pl+2}")
        for k in range(6): a(f"v_max3_u32 v{T[1]}, v{pl+3+2*k}, v{pl+4+2*k}, v{T[1]}")
        a(f"""v_max_u32 v{T[1]}, v{pl+15}, v{T[1]}
        v_cmp_eq_u32 vcc, -1, v{T[1]}
        s_cmp_ge_u32 s24, {SPIN}
        s_cbranch_scc1 {L}_got
        s_cbranch_vccnz {L}_poll
        {L}_got:""")
        self.mark("wo.exch")
        self.sum8(pl, vSx)
        vSy = vSx+1
        a(f"""v_mul_f32 v{vSx}, {fhex(1/512)}, v{vSx}
        v_mul_f32 v{vSy}, {fhex(1/512)}, v{vSy}
        v_fma_f32 v{vSy}, -v{vSx}, v{vSx}, v{vSy}
        v_max_f32 v{vSy}, 0, v{vSy}
        v_add_f32 v{pl}, {fhex(EPS)}, v{vSy}
        v_rsq_f32 v{pl}, v{pl}
        s_lshl_b32 s24, s{sCT}, 8
        v_mul_f32 v{pl+1}, v{pl}, v{pl}
        v_mul_f32 v{pl+1}, v{pl+1}, v{vSy}
        v_add_f32 v{pl+1}, {fhex(EPS)}, v{pl+1}
        v_rsq_f32 v{pl+1}, v{pl+1}
        s_lshl_b32 s25, s26, 1
        v_mul_f32 v{vSy}, v{pl}, v{pl+1}
        v_mul_f32 v{vSx}, v{vSx}, v{vSy}""")
        for i in range(8):
            a(f"v_pk_fma_f32 {vr(acc+2*i,2)}, {vr(acc+2*i,2)}, {vr(vSx,2)}, {vr(vSx,2)} op_sel:[0,1,0] op_sel_hi:[1,1,0] neg_lo:[0,0,1] neg_hi:[0,0,1]")
        for i in range(8): a(f"v_cvt_pk_bf16_f32 v{fr+i}, v{acc+2*i}, v{acc+2*i+1}")
        a(f"""s_add_u32 s24, s24, s25
        s_lshl_b32 s24, s24, 10
        v_mfma_f32_32x32x16_bf16 {vr(d2,16)}, {vr(fr,4)}, {vr(vId,4)}, 0
        v_mfma_f32_32x32x16_bf16 {vr(d2,16)}, {vr(fr+4,4)}, {vr(vId+4,4)}, {vr(d2,16)}
        s_add_u32 s24, s24, {WS_HF}
        s_add_u32 s24, s24, s{sLO}
        s_lshl_b32 s{sFa}, s{sCT}, 5
        s_add_u32 s{sFa}, s{sFa}, s{sRB}
        s_lshl_b32 s{sFa}, s{sFa}, 2
        s_add_u32 s{sFa}, s{sFa}, s{sW}
        s_lshl_b32 s{sFa}, s{sFa}, 7
        s_add_u32 s{sFa}, s{sFa}, {FL_H}
        s_add_u32 s{sFa}, s{sFa}, s{sLO}
        s_nop 3""")
        for i in range(8): a(f"v_cvt_pk_bf16_f32 v{fr+8+i}, v{d2+2*i}, v{d2+2*i+1}")
        a(f"""buffer_store_dwordx4 {vr(fr+8,4)}, v{vHO}, s[12:15], s24 offen sc1
        buffer_store_dwordx4 {vr(fr+12,4)}, v{vHO}, s[12:15], s24 offen offset:1024 sc1""")
        for i in range(NW2A, NW2B): self.wdma(S_W2, 4096, i*4096)
        a(f"s_waitcnt vmcnt({4*(NW2B-NW2A)})")
        self.flag(sFa, False)
        self.mark("H.sig")
        for i in range(NW2B, 8): self.wdma(S_W2, 4096, i*4096)
        self.c_table(wp)
        self.done(r)

    def mlp(self):
        a = self.a; T = self.vT; vL = self.vL; vOff = self.vOff
        r = self.alloc()
        acc = [r.get(32, 4), r.get(32, 4)]
        af = r.get(4*DA, 4)
        wt = r.get(8, 4)
        vB = r.get(4, 4)
        vSx = r.get(2); vG = r.get()
        NS = [32, 32, 28, 28]
        start = [0, 32, 64, 92, 120]
        a(f"""s_lshl_b32 s24, s{sDT}, 1
        s_mul_i32 s25, s24, 112
        s_lshl_b32 s26, s{sFT}, 2
        s_add_u32 s26, s26, s{sW}
        s_add_u32 s25, s25, s26
        s_lshl_b32 s25, s25, 10
        s_add_u32 s25, s25, {WS_UF}
        s_add_u32 s{sSa}, s25, s{sLO}
        s_add_u32 s{sSb}, s{sSa}, {112*1024}
        s_lshl_b32 s25, s24, 7
        s_add_u32 s25, s25, s26
        s_lshl_b32 s25, s25, 7
        s_add_u32 s25, s25, {FL_U}
        s_add_u32 s{sFa}, s25, s{sLO}
        s_add_u32 s{sFb}, s{sFa}, {128*128}
        s_lshl_b32 s25, s{sCT}, 8
        s_mul_i32 s26, s{sW}, 28
        s_add_u32 s25, s25, s26
        s_lshl_b32 s25, s25, 7
        s_add_u32 s25, s25, {FL_U}
        s_add_u32 s{sPa}, s25, s{sLO}
        s_add_u32 s{sPb}, s{sPa}, {128*128}
        s_cmp_ge_u32 s{sCT}, 7
        s_cbranch_scc1 L_mlp_idle""")
        a(f"""s_lshl_b32 s{sOA}, s{sDT}, 18
        s_lshl_b32 s24, s{sW}, 15
        s_add_u32 s{sOA}, s{sOA}, s24
        s_add_u32 s{sOA}, s{sOA}, {WS_HF}
        s_add_u32 s{sOA}, s{sOA}, s{sLO}
        s_lshl_b32 s25, s{sDT}, 2
        s_add_u32 s25, s25, s{sW}
        s_lshl_b32 s25, s25, 12
        s_add_u32 s25, s25, {FL_H}
        s_add_u32 s25, s25, s{sLO}
        v_lshrrev_b32 v{T[0]}, 5, v{vL}
        v_lshlrev_b32 v{T[0]}, 3, v{T[0]}
        s_lshl_b32 s24, s{sFT}, 7
        s_lshl_b32 s26, s{sW}, 5
        s_add_u32 s24, s24, s26
        buffer_load_dwordx2 {vr(vB,2)}, v{T[0]}, {sr(S_B1,4)}, s24 offen
        buffer_load_dwordx2 {vr(vB+2,2)}, v{T[0]}, {sr(S_B1,4)}, s24 offen offset:16""")
        self.poll_lanes(32)
        self.poll(25, self.vPoll)
        self.poll_lanes(28)
        self.mark("H.got")
        vm = VM(a)
        def pas(g): return max(p for p in range(4) if start[p] <= g)
        def lda(g):
            p = pas(g); k = g - start[p]
            if k % 4 == 0 and g > 0:
                if g == 32: a(f"s_add_u32 s{sOA}, s{sOA}, {131072 - 7*4096}")
                elif g == 64: u_base()
                elif g == 92: a(f"s_add_u32 s{sOA}, s{sOA}, {112*1024 - 6*4096}")
                else: a(f"s_add_u32 s{sOA}, s{sOA}, 4096")
            vo = vOff if p < 2 else self.vOffA
            a(f"buffer_load_dwordx4 {vr(af+4*(g%DA),4)}, v{vo}, s[12:15], s{sOA} offen offset:{(k%4)*1024} sc1")
            vm.add(('a', g))
        def u_base():
            a(f"""s_mul_i32 s{sOA}, s{sCT}, {224*1024}
            s_mul_i32 s24, s{sW}, {28*1024}
            s_add_u32 s{sOA}, s{sOA}, s24
            s_add_u32 s{sOA}, s{sOA}, {WS_UF}
            s_add_u32 s{sOA}, s{sOA}, s{sLO}""")
        def rdw(k, wi):
            a(f"ds_read_b64_tr_b16 {vr(wt+4*wi,2)}, v{self.vTW[wi]} offset:{k*2048}")
            a(f"ds_read_b64_tr_b16 {vr(wt+4*wi+2,2)}, v{self.vTW[wi]} offset:{k*2048+1024}")
        def red_write(A):
            def f():
                for i in range(1, 4):
                    a(f"ds_write_b128 v{self.vRedW[i-1]}, {vr(A+8*i,4)}")
                    a(f"ds_write_b128 v{self.vRedW[i-1]}, {vr(A+8*i+4,4)} offset:1024")
            return f
        def red_read(A):
            def f():
                a("s_waitcnt lgkmcnt(0)\ns_barrier")
                for i in range(1, 4):
                    a(f"ds_read_b128 {vr(A+8*i,4)}, v{self.vRedR} offset:{(i-1)*2048}")
                    a(f"ds_read_b128 {vr(A+8*i+4,4)}, v{self.vRedR} offset:{(i-1)*2048+1024}")
            return f
        def lines(ls): return lambda: [a(x) for x in ls]
        ga = -2*math.sqrt(2/math.pi)*math.log2(math.e); gb = ga*0.044715
        def epi_w1(A, sS, sF, tag):
            E = []
            E.append(red_write(A)); E.append(None); E.append(red_read(A))
            E.append(lines([x for i in range(4) for x in (f"v_lshlrev_b32 v{T[0]}, 16, v{vB+i}", f"v_and_b32 v{T[1]}, 0xffff0000, v{vB+i}",
                                                          f"v_add_f32 v{A+2*i}, v{A+2*i}, v{T[0]}", f"v_add_f32 v{A+2*i+1}, v{A+2*i+1}, v{T[1]}")]))
            E.append(lines(["s_waitcnt lgkmcnt(0)", "s_barrier"] + [f"v_add_f32 v{A+8+i}, v{A+8+i}, v{A+16+i}" for i in range(8)] + [f"v_add_f32 v{A+i}, v{A+i}, v{A+24+i}" for i in range(8)]))
            E.append(lines([f"v_add_f32 v{A+i}, v{A+i}, v{A+8+i}" for i in range(8)] + [f"v_mul_f32 v{A+8+i}, v{A+i}, v{A+i}" for i in range(8)]))
            E.append(lines([f"v_mov_b32 v{vG}, {fhex(ga)}", f"s_mov_b32 s26, {fhex(gb)}"] + [f"v_fma_f32 v{A+8+i}, v{A+8+i}, s26, v{vG}" for i in range(8)] + [f"v_mul_f32 v{A+8+i}, v{A+8+i}, v{A+i}" for i in range(8)]))
            E.append(lines([f"v_exp_f32 v{A+8+i}, v{A+8+i}" for i in range(8)]))
            E.append(lines([f"v_add_f32 v{A+8+i}, 1.0, v{A+8+i}" for i in range(8)] + [f"v_rcp_f32 v{A+8+i}, v{A+8+i}" for i in range(4)]))
            E.append(lines([f"v_rcp_f32 v{A+12+i}, v{A+12+i}" for i in range(4)] + [f"v_mul_f32 v{A+i}, v{A+8+i}, v{A+i}" for i in range(8)]))
            def st():
                for i in range(4): a(f"v_cvt_pk_bf16_f32 v{A+16+i}, v{A+2*i}, v{A+2*i+1}")
                a(f"buffer_store_dwordx4 {vr(A+16,4)}, v{vOff}, s[12:15], s{sS} offen sc1"); vm.add(tag)
            E.append(st)
            return E
        def sig(tag, sF, local):
            def f():
                vm.wait({tag}); self.flag(sF, local); vm.add('f')
            return f
        def epi_w2(A, half, last):
            R_ = self.vRes + 8*half
            E = []
            E.append(red_write(A)); E.append(None); E.append(red_read(A))
            E.append(lines([f"v_add_f32 v{A+i}, v{A+i}, v{R_+i}" for i in range(8)] + [f"v_add_f32 v{A+i}, v{A+i}, v{vB}" for i in range(8)]))
            E.append(lines(["s_waitcnt lgkmcnt(0)", "s_barrier"] + [f"v_add_f32 v{A+8+i}, v{A+8+i}, v{A+16+i}" for i in range(8)] + [f"v_add_f32 v{A+i}, v{A+i}, v{A+24+i}" for i in range(8)]))
            E.append(lines([f"v_add_f32 v{R_+i}, v{A+i}, v{A+8+i}" for i in range(8)] + [f"v_cvt_pk_bf16_f32 v{A+16+i}, v{R_+2*i}, v{R_+2*i+1}" for i in range(4)]))
            def st():
                L = a.label("o")
                a(f"s_cmp_lg_u32 s{sLO}, 0\ns_nop 0\nv_permlane32_swap_b32 v{A+16}, v{A+18}\nv_permlane32_swap_b32 v{A+17}, v{A+19}\ns_cbranch_scc1 {L}_out")
                self.lstore([f"buffer_store_dwordx4 {vr(A+16,4)}, v{vOff}, s[12:15], s{sSa if half == 0 else sSb} offen"])
                a(f"{L}_d:")
                vm.add(('x', half))
                def ool():
                    a(f"""{L}_out:
                    v_and_b32 v{T[0]}, 31, v{vL}
                    v_lshlrev_b32 v{T[0]}, 10, v{T[0]}
                    v_lshrrev_b32 v{T[1]}, 5, v{vL}
                    v_lshl_add_u32 v{T[0]}, v{T[1]}, 4, v{T[0]}
                    s_lshl_b32 s24, s{sRB}, 1
                    s_add_u32 s24, s24, s{sSI}
                    s_lshl_b32 s24, s24, 15
                    s_lshl_b32 s25, s{sCT}, 7
                    s_add_u32 s24, s24, s25
                    s_lshl_b32 s25, s{sRH}, 5
                    s_add_u32 s24, s24, s25
                    buffer_store_dwordx4 {vr(A+16,4)}, v{T[0]}, {sr(S_OUT,4)}, s24 offen offset:{64*half}""")
                    if last: self.finish()
                    else: a(f"s_branch {L}_d")
                self.ool.append(ool)
            E.append(st)
            return E
        def x_setup():
            a(f"""s_lshl_b32 s24, s{sRB}, 1
            s_add_u32 s24, s24, s{sSI}
            s_lshl_b32 s24, s24, 5
            s_lshl_b32 s25, s{sCT}, 2
            s_add_u32 s24, s24, s25
            s_add_u32 s24, s24, s{sRH}
            s_lshl_b32 s25, s24, 10
            s_add_u32 s{sSa}, s25, {WS_XF}
            s_add_u32 s{sSb}, s{sSa}, 2048
            s_lshl_b32 s25, s24, 7
            s_add_u32 s25, s25, {FL_X}
            s_add_u32 s{sFa}, s25, s{sLO}
            s_add_u32 s{sFb}, s{sFa}, 256
            v_and_b32 v{T[0]}, 31, v{vL}
            v_lshlrev_b32 v{T[0]}, 1, v{T[0]}
            s_lshl_b32 s24, s{sRB}, 7
            s_lshl_b32 s25, s{sSI}, 6
            s_add_u32 s24, s24, s25
            buffer_load_ushort v{vB}, v{T[0]}, {sr(S_B2,4)}, s24 offen""")
            vm.add('b2')
        side = {}
        def place(g0, E, per=1):
            for i, e in enumerate(E):
                if e: side.setdefault(g0 + i//per, []).append(e)
            return g0 + (len(E)-1)//per + 1
        E0 = epi_w1(acc[0], sSa, sFa, 'uA')
        place(34, E0[:3]); e0 = place(37, E0[3:], EPER); place(e0 - 1 + SIGD, [sig('uA', sFa, False)])
        e2 = place(94, epi_w2(acc[0], 0, False)); place(e2 + 3, [sig(('x', 0), sFa, True)])
        place(86, [x_setup])
        place(95, [lambda: (vm.wait({'b2'}), a(f"v_lshlrev_b32 v{vB}, 16, v{vB}"))])

        def step(g):
            p = pas(g); k = g - start[p]
            A = acc[p & 1]
            x = af + 4*(g % DA)
            inlds = p >= 2 and k < 16
            vm.wait({('a', g)})
            for wi in range(2):
                C = vr(A+16*wi, 16) if k > 0 else "0"
                if p < 2:
                    i = k*8 + 4*wi
                    a(f"v_mfma_f32_32x32x16_bf16 {vr(A+16*wi,16)}, a[{i}:{i+3}], {vr(x,4)}, {C}")
                else:
                    if inlds:
                        a(f"s_waitcnt lgkmcnt({2 if (wi == 0 or k < 15) else 0})")
                        w_ = wt + 4*wi
                    else:
                        w_ = W2R + (k-16)*8 + 4*wi
                    a(f"v_mfma_f32_32x32x16_bf16 {vr(A+16*wi,16)}, {vr(x,4)}, {vr(w_,4)}, {C}")
                    if inlds and k < 15: rdw(k+1, wi)
        for g in range(DA): lda(g)
        for g in range(64):
            step(g)
            if g + DA < 64: lda(g + DA)
            for e in side.get(g, []): e()
            if g == UPOLL:
                a(f"buffer_load_dword v{T[3]}, v{self.vPoll}, s[12:15], s{sPa} offen sc1"); vm.add('pa')
        assert vm.ops[-1] == 'pa'
        self.mark("p1.end")
        a(f"s_waitcnt vmcnt(0)\nv_cmp_eq_u32 vcc, 0, v{T[3]}\ns_nop 1\ns_cbranch_vccnz L_mlp_late")
        self.mark("UA.got")
        vm.ops = []
        for g in range(64, 64+DA): lda(g)
        for e in epi_w1(acc[1], sSb, sFb, 'uB'):
            if e: e()
        place(64 + SIGD2, [sig('uB', sFb, False)])
        ops_main = list(vm.ops)
        a("L_mlp_p2:")
        def late():
            a("L_mlp_late:\ns_nop 7")
            for e in epi_w1(acc[1], sSb, sFb, 'uB'):
                if e: e()
            a(f"buffer_load_dword v{T[3]}, v{self.vPoll}, s[12:15], s{sPa} offen sc1\ns_waitcnt vmcnt(1)")
            self.flag(sFb, False)
            a("s_waitcnt vmcnt(1)")
            self.poll(sPa, self.vPoll, first_issued=True)
            a("L_mlp_join:")
            self.mark("UA.got")
            vm.ops = []
            for g in range(64, 64+DA): lda(g)
            self.flag(sFb, False); vm.add('uB')
            assert vm.ops == ops_main
            a("s_branch L_mlp_p2")
            a("L_mlp_idle:")
            self.poll_lanes(28)
            a(f"""s_lshl_b32 s24, s{sRB}, 2
            s_add_u32 s24, s24, s{sW}
            s_lshl_b32 s24, s24, 7
            s_add_u32 s24, s24, {FL_P + 512*128}
            s_add_u32 s{sFb}, s24, s{sLO}""")
            if QWARM:
                Lw = a.label("qw")
                a(f"""s_cmp_lg_u32 s{sLO}, 0
                s_cbranch_scc1 {Lw}
                s_and_b32 s24, s{sMm}, 3
                s_lshl_b32 s24, s24, 2
                s_add_u32 s24, s24, s{sW}
                s_lshl_b32 s24, s24, 12
                s_mov_b32 s25, 0
                {Lw}_l:""")
                for k in range(4):
                    a(f"buffer_load_dwordx4 {vr(af,4)}, v{vOff}, {sr(S_WQ,4)}, s24 offen offset:{k*1024}")
                a(f"""s_add_u32 s24, s24, 65536
                s_add_u32 s25, s25, 1
                s_cmp_lt_u32 s25, {QWARM}
                s_waitcnt vmcnt(8)
                s_cbranch_scc1 {Lw}_l
                {Lw}:""")
            self.poll(sPa, self.vPoll)
            a("s_branch L_mlp_join")
        self.ool.append(late)
        rdw(0, 0); rdw(0, 1)
        pregs = [T[3], T[2], vG]
        for g in range(64, 120):
            step(g)
            if g + DA == 92:
                self.poll(sPb, self.vPoll, pre=[((lambda k=k: vm.wait({('pb', k)})), pregs[k]) for k in range(len(PBS))])
                self.mark("UB.got")
            if g + DA < 120: lda(g + DA)
            if g in PBS:
                k = PBS.index(g)
                a(f"buffer_load_dword v{pregs[k]}, v{self.vPoll}, s[12:15], s{sPb} offen sc1"); vm.add(('pb', k))
            if g == 91:
                self.mark("p2.end")
                rdw(0, 0); rdw(0, 1)
            for e in side.get(g, []): e()
        self.mark("p3.end")
        E = epi_w2(acc[1], 1, True)
        a("s_nop 11")
        E[0]()
        E[2]()
        Lq = a.label("noq")
        a(f"s_cmp_lg_u32 s{sLO}, 0\ns_cbranch_scc1 {Lq}")
        self.qkv_setup()
        for c in range(NQ0): self.qkv_wdma(c)
        a(f"{Lq}:")
        for e in E[3:]: e()
        A = acc[1]
        for i in range(4): a(f"v_cvt_pk_bf16_f32 v{A+20+i}, v{self.vRes+2*i}, v{self.vRes+2*i+1}")
        self.row_partials([A+16+i for i in range(8)], vSx)
        a(f"""s_lshl_b32 s24, s{sRB}, 1
        s_add_u32 s24, s24, s{sSI}
        s_lshl_b32 s{sPb}, s24, 12
        s_add_u32 s{sPb}, s{sPb}, {WS_S2}""")
        half_sum(a, vSx, T[0]); half_sum(a, vSx+1, T[0])
        a(f"""s_lshl_b32 s25, s{sCT}, 9
        s_add_u32 s25, s25, s{sPb}
        s_lshl_b32 s24, s{sRH}, 3
        s_add_u32 s25, s25, s24
        s_mov_b32 exec_hi, 0""")
        self.lstore([f"buffer_store_dwordx2 {vr(vSx,2)}, v{vOff}, s[12:15], s25 offen"])
        a("s_mov_b64 exec, -1")
        self.mark("x.pub")
        if STAMP: a(f"s_mov_b32 s{sST}, 28")
        self.done(r)

    def finish(self):
        a = self.a; T = self.vT
        if STAMP:
            a(f"""s_waitcnt vmcnt(0)
            s_memrealtime s[44:45]
            s_memtime s[46:47]
            s_waitcnt lgkmcnt(0)
            s_sub_u32 s46, s46, s42
            v_writelane_b32 v{self.vStamp}, s40, 0
            v_writelane_b32 v{self.vStamp}, s44, 1
            v_writelane_b32 v{self.vStamp}, s46, 2
            v_writelane_b32 v{self.vStamp}, s{sLOC}, 63
            s_lshl_b32 s24, s2, 3
            s_add_u32 s24, s24, s{sW}
            s_lshl_b32 s24, s24, 8
            s_add_u32 s24, s24, {WS_ST}
            v_lshlrev_b32 v{T[0]}, 2, v{self.vL}
            buffer_store_dword v{self.vStamp}, v{T[0]}, s[12:15], s24 offen
            buffer_store_dword v{self.vStamp2}, v{T[0]}, s[12:15], s24 offen offset:1024""")
        a("s_endpgm")


XNODS = XNOV = XNOBAR = XNODMA = 0
FORCE_GLOBAL = 0
NW2A, NW2B = 1, 4
SIGD, SIGD2 = 8, 6
EPER = 2
UPOLL = 58
PBS = [72, 76, 80]
NQ0 = 5
NQA, NQB = 0, 3
XBS_AT = 2
QISS = 4
QWARM = 24

def gen_kb(a):
    k = KB(a)
    vm = k.entry()
    k.phase_qkv(0, vm, 11)
    k.attention(0)
    k.attention_epilogue()
    k.phase_wo()
    k.mlp()
    k.phase_qkv(1, VM(a), NQ0)
    k.attention(1)
    a("s_branch L_at_epi")
    i = 0
    while i < len(k.ool):
        k.ool[i](); i += 1
    a("L_kb_end:\ns_endpgm")
    return 163840

def main(out):
    a = Asm()
    lb = gen_kb(a)
    hdr = open(f"cdna_kernels/{NAME}.s.ref").read().split("; Override launch")[0]
    hdr += f"; @launch grid=(256,1,1) block=(256,1,1) lds={lb}\n"
    txt = hdr + '.amdgcn_target "amdgcn-amd-amdhsa--gfx950"\n.text\n' + a.text()
    txt += f""".section .rodata,"a"
.p2align 6
.amdhsa_kernel {NAME}_kernel
  .amdhsa_next_free_vgpr 512
  .amdhsa_next_free_sgpr 96
  .amdhsa_accum_offset 256
  .amdhsa_group_segment_fixed_size 0
  .amdhsa_kernarg_size 88
  .amdhsa_user_sgpr_count 2
  .amdhsa_user_sgpr_kernarg_segment_ptr 1
  .amdhsa_system_sgpr_workgroup_id_x 1
  .amdhsa_float_denorm_mode_32 3
.end_amdhsa_kernel
"""
    open(out, "w").write(txt)
    print(len(txt), "bytes;", sum(1 for l in a.lines if l.startswith("    ")), "instructions")
    if STAMP: open(out + ".marks", "w").write(",".join(MARKS))

if __name__ == "__main__":
    for kv in sys.argv[2:]:
        if kv == "stamp": STAMP = True
        else:
            k, v = kv.split("="); globals()[k] = int(v)
    main(sys.argv[1] if len(sys.argv) > 1 else f"cdna_kernels/{NAME}.s")
```
